```python
import torch

def _softmax(x, axis=-1):
    return torch.softmax(x, dim=axis)
def _gelu(x):
    return torch.nn.functional.gelu(x, approximate="tanh")
def _silu(x):
    return torch.nn.functional.silu(x)
def _sigmoid(x):
    return torch.sigmoid(x)
def _layernorm(x, axis=-1, eps=1e-5):
    m = x.mean(dim=axis, keepdim=True)
    v = x.var(dim=axis, keepdim=True, unbiased=False)
    return (x - m) / torch.sqrt(v + eps)
def _scatter_add(tgt, idx, src, axis=0):
    return tgt.clone().index_add_(axis, idx, src)
def _segment_sum(src, seg, n):
    out = torch.zeros((n,) + src.shape[1:], dtype=src.dtype)
    return out.index_add_(0, seg, src)
def _pad(x, pw):
    flat = tuple(v for pair in reversed(pw) for v in pair)
    return torch.nn.functional.pad(x, flat)

kernel_name = 'recurrent_scan__grouped_kv_mqa__dense_activation_squared_relu__prompt'

def setup_inputs():

    _w = (lambda a: (lambda t: t.to(torch.bfloat16) if t.is_floating_point() else t)(torch.as_tensor(a)))
    def _A_setup():
        B, S, D, H = 1, 2048, 512, 32
        Dh = D // H
        return {
            "x": _w((lambda *s: torch.randn(*s, dtype=torch.bfloat16) * 0.05)(B, S, D)),
            "wq": _w((lambda *s: torch.randn(*s, dtype=torch.bfloat16) * 0.05)(D, H * Dh)),
            "wk": _w((lambda *s: torch.randn(*s, dtype=torch.bfloat16) * 0.05)(D, Dh)),
            "wv": _w((lambda *s: torch.randn(*s, dtype=torch.bfloat16) * 0.05)(D, Dh)),
            "wo": _w((lambda *s: torch.randn(*s, dtype=torch.bfloat16) * 0.05)(H * Dh, D)),
        }
    _A_in = _A_setup()

    def _B_setup():
        B, S, D, F = 1, 2048, 512, 1792
        return {
            "x": _w((lambda *s: torch.randn(*s, dtype=torch.bfloat16) * 0.05)(B, S, D)),
            "w1": _w((lambda *s: torch.randn(*s, dtype=torch.bfloat16) * 0.05)(D, F)),
            "b1": _w((lambda *s: torch.randn(*s, dtype=torch.bfloat16) * 0.4)(F)),
            "w2": _w((lambda *s: torch.randn(*s, dtype=torch.bfloat16) * 0.05)(F, D)),
            "b2": _w((lambda *s: torch.randn(*s, dtype=torch.bfloat16) * 1.6)(D)),
        }
    _B_in = _B_setup()

    return {
        "A_x": _A_in["x"],
        "A_wq": _A_in["wq"],
        "A_wk": _A_in["wk"],
        "A_wv": _A_in["wv"],
        "A_wo": _A_in["wo"],
        "B_x": _B_in["x"],
        "B_w1": _B_in["w1"],
        "B_b1": _B_in["b1"],
        "B_w2": _B_in["w2"],
        "B_b2": _B_in["b2"],
    }

def reference(A_x, A_wq, A_wk, A_wv, A_wo, B_x, B_w1, B_b1, B_w2, B_b2):
    def _A_ref(x, wq, wk, wv, wo):
        B, S, D = x.shape
        H = 32
        Dh = D // H
        q = (lambda x, *d: x.permute(*d))((x @ wq).reshape(B, S, H, Dh), 0, 2, 1, 3)
        k = x @ wk
        v = x @ wv
        scores = torch.einsum("bhqd,bkd->bhqk", q, k) * (Dh ** -0.5)
        p = _softmax(scores, axis=-1)
        o = torch.einsum("bhqk,bkd->bhqd", p, v)
        return (lambda x, *d: x.permute(*d))(o, 0, 2, 1, 3).reshape(B, S, H * Dh) @ wo

    def _B_ref(x, w1, b1, w2, b2):
        h = torch.einsum("bsd,df->bsf", x, w1) + b1
        zero = torch.zeros_like(h)
        r = torch.where(h > zero, h, zero)
        h = r * r
        out = torch.einsum("bsf,fd->bsd", h, w2) + b2
        return out

    x = A_x
    xn = _layernorm(x, axis=-1)
    s = _A_ref(xn, A_wq, A_wk, A_wv, A_wo)
    g = _silu(_B_ref(xn, B_w1, B_b1, B_w2, B_b2))
    return x + s * g
```

```python
class Asm:
    def __init__(self):
        self.L = []
        self.vm = []
        self.lg = []
        self.prio = 0
    def __call__(self, s):
        for line in s.split("\n"):
            line = line.strip()
            if line:
                if line.startswith("s_setprio"): self.prio = int(line.split()[1])
                self.L.append(("" if line.endswith(":") or line.startswith(".") else "    ") + line)
    def c(self, s):
        self.L.append("    ; " + s)
    def label(self, s):
        self.L.append(s + ":")
    def vmem(self, s, tag=None):
        self(s); self.vm.append(tag)
    def lds(self, s, tag=None):
        self(s); self.lg.append(tag)
    def _need(self, q, tags):
        idx = -1
        for i, t in enumerate(q):
            if t in tags: idx = i
        return idx
    def wait(self, vm=None, lg=None):
        parts = []
        if vm is not None:
            if vm == "all":
                parts.append("vmcnt(0)"); self.vm = []
            else:
                i = self._need(self.vm, set(vm))
                if i >= 0:
                    n = len(self.vm) - 1 - i
                    assert n <= 62, n
                    parts.append(f"vmcnt({n})"); self.vm = self.vm[i + 1:]
        if lg is not None:
            if lg == "all":
                parts.append("lgkmcnt(0)"); self.lg = []
            else:
                i = self._need(self.lg, set(lg))
                if i >= 0:
                    n = len(self.lg) - 1 - i
                    if n > 14:
                        n = 14
                        self.lg = self.lg[-14:]
                    else:
                        self.lg = self.lg[i + 1:]
                    parts.append(f"lgkmcnt({n})")
        if parts:
            self("s_waitcnt " + " ".join(parts))
    def reset(self):
        self.vm = []; self.lg = []
    def text(self):
        return "\n".join(self.L) + "\n"

def v(a, n=1):
    return f"v{a}" if n == 1 else f"v[{a}:{a+n-1}]"
def s(a, n=1):
    return f"s{a}" if n == 1 else f"s[{a}:{a+n-1}]"
```

```python
import sys, math, struct
from asmlib import Asm, v, s

NAME = "recurrent_scan__grouped_kv_mqa__dense_activation_squared_relu__prompt"
OPT = dict(stamps=0, force_slow=0, lay=(1, 4, 7), d1=17)
for a_ in sys.argv[2:]:
    k_, x_ = a_.split("=")
    OPT[k_] = eval(x_)

def f2u(x): return struct.unpack("<I", struct.pack("<f", x))[0]

WS_EPOCH = 0
WS_FKV = 0x1000
WS_FH = 0x10000
WS_FO = 0x20000
WS_KV = 0x40000
WS_OIM = 0x100000
WS_HIM = 0x400000
WS_STAMP = 0xC00000
WS_SIZE = 0x1000000
HRB = 229376
XN = 0; XNS = 1040
WO = 0
WQ = 66560; RING = 66560; ORED = 66560; GRED = 66560
WKV = 132096; QX = 148480; GIM = 132096; GIS = 272
CNT = 156672
LDS_BYTES = 156736
sW8, sRB, sJ, sW, sTAG = 3, 4, 5, 6, 7
rX, rWQ, rWKV, rWO, rW1, rB1, rW2, rB2, rOUT, rWS = 8, 12, 16, 20, 24, 28, 32, 36, 40, 44
sT = 56
sMASK = 80
sSAVE = 82
sCNT = 84
sCUR = 85; sCUR2 = 86; sRING = 87; sU = 88; sLOOP = 89
sST = 90
SPIN = 400000

A = Asm()
nstamp = [0]
def stamp(idx):
    if not OPT["stamps"]: return
    A(f"""
    s_memtime s[90:91]
    s_waitcnt lgkmcnt(0)
    v_writelane_b32 v15, s90, {idx}
    """)
    A.lg = []
def stamp_rt(idx):
    if not OPT["stamps"]: return
    A(f"""
    s_memrealtime s[90:91]
    s_waitcnt lgkmcnt(0)
    v_writelane_b32 v15, s90, {idx}
    """)
    A.lg = []
def stamp_flush():
    if not OPT["stamps"]: return
    A(f"""
    s_lshl_b32 s92, s2, 3
    s_add_u32 s92, s92, s{sW8}
    s_lshl_b32 s92, s92, 8
    s_add_u32 s92, s92, {WS_STAMP}
    v_and_b32 v14, 63, v0
    v_lshlrev_b32 v14, 2, v14
    buffer_store_dword v15, v14, s[{rWS}:{rWS+3}], s92 offen
    """)

def poll(voff, vtmp, name, sleep=0):
    A(f"s_mov_b32 s{sCNT}, {SPIN}")
    A.label(f"L_poll_{name}")
    A(f"""
    buffer_load_dword v{vtmp}, v{voff}, s[{rWS}:{rWS+3}], 0 offen sc1
    s_waitcnt vmcnt(0)
    v_cmp_ne_u32 vcc, s{sTAG}, v{vtmp}
    s_cbranch_vccz L_done_{name}
    """)
    if sleep: A(f"s_sleep {sleep}")
    A(f"""
    s_sub_u32 s{sCNT}, s{sCNT}, 1
    s_cmp_lg_u32 s{sCNT}, 0
    s_cbranch_scc1 L_poll_{name}
    """)
    A.label(f"L_done_{name}")
    A.vm = []

def set_flag(soff, vt0, vt1):
    A(f"""
    v_mov_b32 v{vt0}, s{sTAG}
    v_mov_b32 v{vt1}, 0
    s_mov_b64 exec, 1
    """)
    A.vmem(f"buffer_store_dword v{vt0}, v{vt1}, s[{rWS}:{rWS+3}], s{soff} offen sc1")
    A("s_mov_b64 exec, -1")

def lds_signal(off, vt0, vt1):
    A(f"""
    v_mov_b32 v{vt0}, 1
    v_mov_b32 v{vt1}, {CNT + off}
    s_mov_b64 exec, 1
    """)
    A.lds(f"ds_add_u32 v{vt1}, v{vt0}")
    A("s_mov_b64 exec, -1")

def lds_spin(off, n, vt0, vt1, name):
    A(f"""
    v_mov_b32 v{vt1}, {CNT + off}
    s_mov_b32 s{sCNT}, {SPIN * 4}
    """)
    A.label(f"L_spin_{name}")
    A(f"""
    ds_read_b32 v{vt0}, v{vt1}
    s_waitcnt lgkmcnt(0)
    v_cmp_ne_u32 vcc, {n}, v{vt0}
    s_cbranch_vccz L_spun_{name}
    s_sub_u32 s{sCNT}, s{sCNT}, 1
    s_cmp_lg_u32 s{sCNT}, 0
    s_cbranch_scc1 L_spin_{name}
    """)
    A.label(f"L_spun_{name}")
    A.lg = []

def tr_common(dst, t0):
    A(f"""
    v_and_b32 v{dst}, 3, v1
    v_lshlrev_b32 v{dst}, 3, v{dst}
    v_and_b32 v{t0}, 16, v1
    v_lshl_or_b32 v{dst}, v{t0}, 1, v{dst}
    v_and_b32 v{t0}, 8, v1
    v_lshl_or_b32 v{dst}, v{t0}, 3, v{dst}
    v_and_b32 v{t0}, 12, v1
    v_lshl_or_b32 v{dst}, v{t0}, 5, v{dst}
    """)

A(f"""
s_cmp_ge_u32 s2, 256
s_cbranch_scc1 L_end
s_lshr_b32 s{sT}, s2, 3
s_and_b32 s{sJ}, s{sT}, 7
s_and_b32 s{sT+1}, s{sT}, 1
s_lshl_b32 s{sT+1}, s{sT+1}, 3
s_add_u32 s{sT+1}, s{sT+1}, 16
s_load_dwordx2 s[{rX}:{rX+1}], s[0:1], 0
s_load_dwordx2 s[{rWQ}:{rWQ+1}], s[0:1], 8
s_load_dwordx2 s[{rWKV}:{rWKV+1}], s[0:1], s{sT+1}
s_load_dwordx2 s[{rWS}:{rWS+1}], s[0:1], 96
s_load_dwordx2 s[{rWO}:{rWO+1}], s[0:1], 32
s_load_dwordx2 s[{rW1}:{rW1+1}], s[0:1], 48
s_load_dwordx2 s[{rB1}:{rB1+1}], s[0:1], 56
s_load_dwordx2 s[{rW2}:{rW2+1}], s[0:1], 64
s_load_dwordx2 s[{rB2}:{rB2+1}], s[0:1], 72
s_load_dwordx2 s[{rOUT}:{rOUT+1}], s[0:1], 80
v_lshrrev_b32 v2, 6, v0
v_and_b32 v1, 63, v0
s_lshr_b32 s{sT}, s{sT}, 3
v_readfirstlane_b32 s{sW8}, v2
s_and_b32 s{sRB}, s2, 7
s_lshl_b32 s{sRB}, s{sRB}, 2
s_add_u32 s{sRB}, s{sRB}, s{sT}
""")
for r, n in [(rX, 2097152), (rWQ, 524288), (rWKV, 16384), (rWS, WS_SIZE), (rWO, 524288), (rW1, 1835008),
             (rB1, 3584), (rW2, 1835008), (rB2, 1024), (rOUT, 2097152)]:
    A(f"s_mov_b32 s{r+2}, {n}\ns_mov_b32 s{r+3}, 0x20000")
if OPT["stamps"]:
    A("v_mov_b32 v15, 0")
A(f"""
s_and_b32 s{sW}, s{sW8}, 3
v_lshrrev_b32 v3, 3, v1
v_and_b32 v4, 7, v1
v_lshlrev_b32 v4, 4, v4
v_lshl_or_b32 v5, v3, 10, v4
v_and_b32 v6, 16, v1
v_lshlrev_b32 v6, 2, v6
v_xor_b32 v6, v5, v6
v_lshlrev_b32 v7, 4, v1
s_lshl_b32 s{sT}, s{sRB}, 16
s_lshl_b32 s{sT+1}, s{sW8}, 13
s_add_u32 s{sT}, s{sT}, s{sT+1}
s_waitcnt lgkmcnt(0)
""")
stamp_rt(0); stamp(1)
XR = 16; CR = 48
for i in range(8):
    A.vmem(f"buffer_load_dwordx4 {v(XR+4*i,4)}, v5, {s(rX,4)}, s{sT} offen offset:{128*i}", f"x{i}")
A("v_mov_b32 v9, 0")
A.vmem(f"buffer_load_dword v10, v9, {s(rWS,4)}, 0 offen sc1", "epoch")
A(f"""
s_lshl_b32 s{sT+2}, s{sW8}, 11
s_add_u32 m0, s{sT+2}, {WKV}
s_lshl_b32 s{sT+3}, s{sW8}, 16
""")
A.vmem(f"buffer_load_dwordx4 v7, {s(rWKV,4)}, s{sT+2} offen lds", "dma")
A.vmem(f"buffer_load_dwordx4 v7, {s(rWKV,4)}, s{sT+2} offen offset:1024 lds", "dma")
A(f"""
s_lshl_b32 s{sT+4}, s{sJ}, 7
s_add_u32 s{sT+3}, s{sT+3}, s{sT+4}
s_add_u32 m0, s{sT+1}, {WQ}
""")
for i in range(8):
    if i == 4:
        A(f"s_add_u32 m0, s{sT+1}, {WQ + 4096}\ns_add_u32 s{sT+3}, s{sT+3}, {8192 + 3072}")
    elif i:
        A(f"s_add_u32 s{sT+3}, s{sT+3}, 7168")
    else:
        A("s_nop 0")
    A.vmem(f"buffer_load_dwordx4 v6, {s(rWQ,4)}, s{sT+3} offen offset:{1024*(i%4)} lds", "dma")
A(f"""
s_mul_i32 s{sT+5}, s{sW8}, {8*XNS}
v_mul_u32_u24 v8, {XNS}, v3
v_add3_u32 v8, v8, v4, s{sT+5}
v_mov_b32 v12, 0
v_mov_b32 v13, 0
v_mov_b32 v11, {CNT}
s_mov_b32 s{sT+6}, 0x3f803f80
s_mov_b32 s{sT+7}, 0x00003f80
s_mov_b32 s{sT+8}, 0x3f800000
""")
A.lds("ds_write_b64 v11, v[12:13]")
def red8(r):
    A(f"""
    v_add_f32_dpp v{r}, v{r}, v{r} quad_perm:[1,0,3,2] row_mask:0xf bank_mask:0xf
    s_nop 1
    v_add_f32_dpp v{r}, v{r}, v{r} quad_perm:[2,3,0,1] row_mask:0xf bank_mask:0xf
    s_nop 1
    v_add_f32_dpp v{r}, v{r}, v{r} row_half_mirror row_mask:0xf bank_mask:0xf
    """)
A("v_mov_b32 v2, 0")
for i in range(8):
    A.wait(vm=[f"x{i}"])
    if i == 0: stamp(2)
    for d in range(4):
        A(f"v_dot2c_f32_bf16 v2, s{sT+6}, v{XR+4*i+d}")
A("s_nop 2")
red8(2)
A(f"v_mul_f32 v2, {hex(f2u(-1.0/512))}, v2")
for p in range(32):
    A(f"v_dot2_f32_bf16 v{CR+2*p}, v{XR+p}, s{sT+7}, v2")
    A(f"v_dot2_f32_bf16 v{CR+2*p+1}, v{XR+p}, s{sT+8}, v2")
A(f"v_pk_mul_f32 v[112:113], {v(CR,2)}, {v(CR,2)}")
A(f"v_pk_mul_f32 v[114:115], {v(CR+2,2)}, {v(CR+2,2)}")
for p in range(2, 32):
    a = 112 + 2 * (p % 2)
    A(f"v_pk_fma_f32 {v(a,2)}, {v(CR+2*p,2)}, {v(CR+2*p,2)}, {v(a,2)}")
A(f"""
v_pk_add_f32 v[112:113], v[112:113], v[114:115]
s_mov_b32 s{sT+9}, {hex(f2u(1.0/512))}
v_add_f32 v112, v112, v113
v_mov_b32 v113, {hex(f2u(1e-5))}
s_nop 0
""")
red8(112)
A(f"""
v_fma_f32 v112, v112, s{sT+9}, v113
v_rsq_f32 v112, v112
s_nop 0
""")
for i in range(8):
    for d in range(4):
        p = 4 * i + d
        A(f"v_pk_mul_f32 {v(CR+2*p,2)}, {v(CR+2*p,2)}, v[112:113] op_sel_hi:[1,0]")
    for d in range(4):
        p = 4 * i + d
        A(f"v_cvt_pk_bf16_f32 v{XR+p}, v{CR+2*p}, v{CR+2*p+1}")
    A.lds(f"ds_write_b128 v8, {v(XR+4*i,4)} offset:{128*i}")
A.wait(vm="all")
A(f"""
v_readfirstlane_b32 s{sTAG}, v10
s_waitcnt lgkmcnt(0)
s_add_u32 s{sTAG}, s{sTAG}, 0x9E3779B9
""")
A.reset()
stamp(3)
A(f"""
s_barrier
s_cmp_ge_u32 s{sW8}, 4
s_cbranch_scc1 L_helper
""")

A.c("---------------- Q projection ----------------")
stamp(4)
tr_common(2, 3)
A(f"""
s_lshr_b32 s{sT}, s{sW}, 1
s_and_b32 s{sT+1}, s{sW}, 1
s_lshl_b32 s{sT+2}, s{sT}, 6
v_and_b32 v3, 32, v1
v_lshl_or_b32 v2, v3, 5, v2
v_xor_b32 v2, s{sT+2}, v2
v_add_u32 v2, {WQ}, v2
s_mul_i32 s{sT+3}, s{sT+1}, {32*XNS}
v_and_b32 v4, 31, v1
v_mul_u32_u24 v4, {XNS}, v4
v_lshrrev_b32 v3, 1, v3
v_add3_u32 v4, v4, v3, s{sT+3}
""")
QA = 16; QACC = 64; ND = 4
def q_read(ks):
    b = QA + 8 * (ks % ND)
    A.lds(f"ds_read_b64_tr_b16 {v(b,2)}, v2 offset:{2048*ks}", f"q{ks}")
    A.lds(f"ds_read_b64_tr_b16 {v(b+2,2)}, v2 offset:{2048*ks+512}", f"q{ks}")
    A.lds(f"ds_read_b128 {v(b+4,4)}, v4 offset:{32*ks}", f"q{ks}")
for ks in range(ND - 1): q_read(ks)
for ks in range(32):
    if ks + ND - 1 < 32: q_read(ks + ND - 1)
    A.wait(lg=[f"q{ks}"])
    b = QA + 8 * (ks % ND)
    A(f"v_mfma_f32_32x32x16_bf16 {v(QACC,16)}, {v(b,4)}, {v(b+4,4)}, {v(QACC,16) if ks else 0}")
OA = 128
QF = 96
SB = 64
KB = 40
VB = 48
vIDX, vKO, vVO, vFL = 5, 7, 6, 8
vRW = 16
for r in range(OA, OA + 24): A(f"v_mov_b32 v{r}, 0")
A(f"""
s_lshl_b32 s{sT+4}, s{sT}, 2
s_add_u32 s{sT+4}, s{sT+4}, s{sT+1}
s_lshl_b32 s{sT+4}, s{sT+4}, 10
s_add_u32 s{sT+4}, s{sT+4}, {QX}
v_add_u32 v9, s{sT+4}, v7
s_mov_b32 s{sT+5}, {hex(f2u(0.25*math.log2(math.e)))}
""")
for r in range(16): A(f"v_mul_f32 v{QACC+r}, s{sT+5}, v{QACC+r}")
for p in range(8): A(f"v_cvt_pk_bf16_f32 v{QA+p}, v{QACC+2*p}, v{QACC+2*p+1}")
A.lds(f"ds_write_b128 v9, {v(QA,4)}")
A.lds(f"ds_write_b128 v9, {v(QA+4,4)} offset:2048")
for r in range(OA + 24, OA + 64): A(f"v_mov_b32 v{r}, 0")
A.wait(lg="all")
stamp(5)
A("s_barrier")
for p in range(4):
    A(f"""
    s_add_u32 s{sT}, s{sW}, {1+p}
    s_and_b32 s{sT}, s{sT}, 3
    s_lshl_b32 s{sT+1}, s{sT}, 11
    s_add_u32 s{sT+1}, s{sT+1}, {QX}
    v_add_u32 v9, s{sT+1}, v7
    """)
    A.lds(f"ds_read_b128 {v(QF+8*p,4)}, v9")
    A.lds(f"ds_read_b128 {v(QF+8*p+4,4)}, v9 offset:1024")
    if p < 3:
        A(f"""
        s_mul_i32 s{sT+2}, s{sT}, {3*4608}
        s_add_u32 s{sT+2}, s{sT+2}, {ORED + 4608*p}
        v_add_u32 v{vRW+p}, s{sT+2}, v7
        v_lshl_add_u32 v{vRW+3+p}, v1, 2, s{sT+2}
        """)
A(f"""
s_mul_i32 s{sT+2}, s{sW}, {3*4608}
s_add_u32 s{sT+2}, s{sT+2}, {ORED}
v_add_u32 v{vRW+6}, s{sT+2}, v7
v_lshl_add_u32 v{vRW+7}, v1, 2, s{sT+2}
""")
for r in range(OA + 64, OA + 128): A(f"v_mov_b32 v{r}, 0")
for r in range(SB + 16, SB + 32): A(f"v_mov_b32 v{r}, 0")
for r in range(VB, VB + 16): A(f"v_mov_b32 v{r}, 0x3f803f80")
A(f"""
v_mov_b32 v{vIDX}, 0xdddddddd
v_and_b32 v{vVO}, 15, v1
v_lshlrev_b32 v{vVO}, 4, v{vVO}
v_and_b32 v3, 32, v1
v_lshl_or_b32 v{vVO}, v3, 3, v{vVO}
s_lshl_b32 s{sT}, s{sW}, 12
s_add_u32 s{sT}, s{sT}, {WS_FKV}
v_lshl_add_u32 v{vFL}, v1, 6, s{sT}
s_mov_b32 s{sMASK}, 0x0000ffff
s_mov_b32 s{sMASK+1}, 0x0000ffff
s_lshl_b32 s{sCUR}, s{sW}, 15
s_add_u32 s{sCUR}, s{sCUR}, {WS_KV}
""")
stamp(6)
poll(vFL, 9, "kv")
stamp(7)
def kv_load(buf):
    return [f"buffer_load_dwordx4 {v(KB+4*buf,4)}, v{vKO}, {s(rWS,4)}, s{sCUR} offen sc1",
            f"s_mov_b64 exec, s[{sMASK}:{sMASK+1}]",
            f"buffer_load_dwordx4 {v(VB+8*buf,4)}, v{vVO}, {s(rWS,4)}, s{sCUR} offen offset:1024 sc1",
            f"buffer_load_dwordx4 {v(VB+8*buf+4,4)}, v{vVO}, {s(rWS,4)}, s{sCUR} offen offset:1536 sc1",
            "s_mov_b64 exec, -1",
            f"s_add_u32 s{sCUR}, s{sCUR}, 2048"]
for x in kv_load(0): A(x)
A(f"""
s_setprio 1
s_mov_b32 s{sLOOP}, 7
s_waitcnt vmcnt(0) lgkmcnt(0)
""")
stamp(8)
A(f"""
v_mfma_f32_32x32x16_bf16 {v(SB,16)}, {v(KB,4)}, {v(QF,4)}, 0
s_nop 11
""")
A.reset()
def ored_write(slot):
    p, t = slot // 2, slot % 2
    o = OA + 16 * slot
    return [f"ds_write_b128 v{vRW+p}, {v(o,4)} offset:{2304*t}",
            f"ds_write_b128 v{vRW+p}, {v(o+4,4)} offset:{2304*t+1024}",
            f"ds_write_b32 v{vRW+3+p}, v{o+8} offset:{2304*t+2048}"]
def att_pass(par, loads=True, last=False):
    p0, p1, p2 = OPT["lay"]
    for i in range(8):
        cur = SB + 16 * (i % 2); oth = SB + 16 * ((i + 1) % 2)
        tp = (i - 1) % 8; tn = (i + 1) % 8
        vb = VB + 8 * (par if i >= 1 else 1 - par)
        kb = KB + 4 * (par if i < 7 else 1 - par)
        ins = {}
        ins.setdefault(p0, []).append(f"v_smfmac_f32_32x32x32_bf16 {v(OA+16*tp,16)}, {v(vb,4)}, {v(oth,8)}, v{vIDX}")
        ins.setdefault(p1, []).append(f"v_smfmac_f32_32x32x32_bf16 {v(OA+16*tp,16)}, {v(vb+4,4)}, {v(oth+8,8)}, v{vIDX}")
        if not (last and i == 7):
            if i == 7: ins.setdefault(p2, []).append("s_waitcnt vmcnt(0)")
            ins.setdefault(p2, []).append(f"v_mfma_f32_32x32x16_bf16 {v(oth,16)}, {v(kb,4)}, {v(QF+4*tn,4)}, 0")
        if loads and i == 0:
            ins.setdefault(p2 + 3, []).extend(kv_load(1 - par))
        if last and 1 <= i <= 6:
            ins.setdefault(14, []).extend(ored_write(i - 1))
        for e in range(16):
            for x in ins.get(e, []): A(x)
            A(f"v_exp_f32 v{cur+e}, v{cur+e}")
A(".p2align 6")
A.label("L_att_loop")
att_pass(0); att_pass(1)
A(f"""
s_sub_u32 s{sLOOP}, s{sLOOP}, 1
s_cmp_lg_u32 s{sLOOP}, 0
s_cbranch_scc1 L_att_loop
""")
att_pass(0)
stamp(9)
A("s_barrier")
att_pass(1, loads=False, last=True)
A(f"""
v_smfmac_f32_32x32x32_bf16 {v(OA+112,16)}, {v(VB+8,4)}, {v(SB+16,8)}, v{vIDX}
s_waitcnt lgkmcnt(0)
v_smfmac_f32_32x32x32_bf16 {v(OA+112,16)}, {v(VB+12,4)}, {v(SB+24,8)}, v{vIDX}
""")
stamp(10)
A("s_barrier")
A.reset()
RB_ = OA
def rbuf(p, t): return RB_ + 12 * (2 * p + t)
for t in range(2):
    for p in range(3):
        b = rbuf(p, t)
        A.lds(f"ds_read_b32 v{b+8}, v{vRW+7} offset:{4608*p+2304*t+2048}", f"r{p}{t}")
        A.lds(f"ds_read_b128 {v(b,4)}, v{vRW+6} offset:{4608*p+2304*t}", f"r{p}{t}")
        A.lds(f"ds_read_b128 {v(b+4,4)}, v{vRW+6} offset:{4608*p+2304*t+1024}", f"r{p}{t}")
A(f"""
s_lshl_b32 s{sT}, s{sJ}, 2
s_add_u32 s{sT}, s{sT}, s{sW}
s_lshl_b32 s{sT+1}, s{sRB}, 5
s_add_u32 s{sT}, s{sT}, s{sT+1}
s_lshl_b32 s{sT+2}, s{sT}, 11
s_add_u32 s{sT+2}, s{sT+2}, {WS_OIM}
s_lshl_b32 s{sT+3}, s{sT}, 6
s_add_u32 s{sT+3}, s{sT+3}, {WS_FO}
""")
for t in range(2):
    o = OA + 96 + 16 * t
    for p in range(3):
        b = rbuf(p, t)
        A.wait(lg=[f"r{p}{t}"])
        A(f"v_add_f32 v{o+8}, v{o+8}, v{b+8}")
        for q in range(4):
            A(f"v_pk_add_f32 {v(o+2*q,2)}, {v(o+2*q,2)}, {v(b+2*q,2)}")
lds_signal(0, 9, 10)
A(f"""
s_mov_b32 s{sT+4}, {hex(f2u(2.0**-30))}
s_mov_b32 s{sT+5}, {hex(f2u(2.0**60))}
v_maximum3_f32 v9, |v{OA+96}|, |v{OA+97}|, |v{OA+98}|
v_maximum3_f32 v10, |v{OA+112}|, |v{OA+113}|, |v{OA+114}|
v_maximum3_f32 v9, v9, |v{OA+99}|, |v{OA+100}|
v_maximum3_f32 v10, v10, |v{OA+115}|, |v{OA+116}|
v_maximum3_f32 v9, v9, |v{OA+101}|, |v{OA+102}|
v_maximum3_f32 v10, v10, |v{OA+117}|, |v{OA+118}|
v_maximum3_f32 v9, v9, |v{OA+103}|, |v{OA+119}|
v_maximum3_f32 v9, v9, v10, v10
v_cmp_nle_f32 s[{sT+6}:{sT+7}], s{sT+4}, v{OA+104}
v_cmp_nle_f32 s[{sT+8}:{sT+9}], s{sT+4}, v{OA+120}
v_cmp_nge_f32 s[{sT+10}:{sT+11}], s{sT+5}, v{OA+104}
v_cmp_nge_f32 s[{sT+12}:{sT+13}], s{sT+5}, v{OA+120}
v_cmp_nge_f32 vcc, 0x7f000000, v9
s_or_b64 s[{sT+6}:{sT+7}], s[{sT+6}:{sT+7}], s[{sT+8}:{sT+9}]
s_or_b64 s[{sT+10}:{sT+11}], s[{sT+10}:{sT+11}], s[{sT+12}:{sT+13}]
s_or_b64 s[{sT+6}:{sT+7}], s[{sT+6}:{sT+7}], vcc
s_or_b64 s[{sT+6}:{sT+7}], s[{sT+6}:{sT+7}], s[{sT+10}:{sT+11}]
""")
if OPT["force_slow"]:
    A("s_branch L_slow")
else:
    A("s_cbranch_scc1 L_slow")
A.label("L_norm")
A(f"""
v_rcp_f32 v{OA+104}, v{OA+104}
v_rcp_f32 v{OA+120}, v{OA+120}
""")
for t in range(2):
    o = OA + 96 + 16 * t
    for q in range(4):
        A(f"v_pk_mul_f32 {v(o+2*q,2)}, {v(o+2*q,2)}, {v(o+8,2)} op_sel_hi:[1,0]")
    for q in range(4):
        A(f"v_cvt_pk_bf16_f32 v{o+12+q}, v{o+2*q}, v{o+2*q+1}")
    A(f"buffer_store_dwordx4 {v(o+12,4)}, v7, {s(rWS,4)}, s{sT+2} offen offset:{1024*t} sc1")
stamp(11)
A.reset()
EO = 16; EACC = 80; EX = 96; EA = 112; NE = 9
A(f"""
v_and_b32 v2, 3, v1
v_lshlrev_b32 v2, 3, v2
v_and_b32 v3, 28, v1
v_lshl_or_b32 v2, v3, 5, v2
v_and_b32 v3, 32, v1
v_lshl_or_b32 v2, v3, 6, v2
v_and_b32 v3, 24, v1
v_lshl_or_b32 v2, v3, 2, v2
v_xor_b32 v3, 32, v2
v_xor_b32 v4, 64, v2
v_xor_b32 v5, 0x60, v2
""")
def e_read(ks):
    b = EA + 16 * (ks % NE)
    for t4 in range(4):
        for i in range(2):
            A.lds(f"ds_read_b64_tr_b16 {v(b+4*t4+2*i,2)}, v{2+t4} offset:{WO+4096*ks+1024*i}", f"e{ks}")
for ks in range(7): e_read(ks)
A(f"""
v_and_b32 v9, 15, v1
v_lshrrev_b32 v13, 4, v1
s_lshl_b32 s{sT+4}, s{sW}, 4
v_add_u32 v12, s{sT+4}, v9
v_lshlrev_b32 v10, 10, v12
v_mul_u32_u24 v12, {GIS}, v12
v_lshl_add_u32 v12, v13, 4, v12
v_add_u32 v12, {GIM}, v12
v_and_b32 v14, 16, v1
v_lshl_or_b32 v11, v14, 1, v10
v_and_b32 v8, 32, v1
v_lshrrev_b32 v8, 1, v8
v_or_b32 v11, v11, v8
v_lshl_or_b32 v10, v13, 3, v10
v_lshlrev_b32 v6, 4, v9
v_lshl_or_b32 v6, v14, 5, v6
v_and_b32 v8, 32, v1
v_lshl_or_b32 v6, v8, 6, v6
s_lshl_b32 s{sT+8}, s{sRB}, 16
s_lshl_b32 s{sT+9}, s{sJ}, 7
s_add_u32 s{sT+9}, s{sT+9}, s{sT+8}
s_lshr_b32 s{sT+10}, s{sW}, 1
s_lshl_b32 s{sT+10}, s{sT+10}, 10
s_and_b32 s{sT+11}, s{sW}, 1
s_lshl_b32 s{sT+11}, s{sT+11}, 8
s_add_u32 s{sT+10}, s{sT+10}, s{sT+11}
s_add_u32 s{sT+10}, s{sT+10}, s{sT+8}
s_add_u32 s{sCUR}, s{sT+10}, {WS_OIM}
s_lshl_b32 s{sT+12}, s{sRB}, 11
s_add_u32 s{sT+12}, s{sT+12}, {WS_FO}
v_and_b32 v8, 31, v1
v_lshl_add_u32 v8, v8, 6, s{sT+12}
s_waitcnt vmcnt(0)
""")
set_flag(sT + 3, 9, 13)
stamp(12)
A(f"""
s_or_b32 s{sT+13}, s2, s{sW8}
s_cmp_lg_u32 s{sT+13}, 0
s_cbranch_scc1 L_noepoch
s_mov_b64 exec, 1
buffer_store_dword v9, v13, {s(rWS,4)}, 0 offen sc1
s_mov_b64 exec, -1
""")
A.label("L_noepoch")
for t4 in range(4):
    A(f"buffer_load_dwordx2 {v(EO+2*t4,2)}, v10, {s(rX,4)}, s{sT+9} offen offset:{32*t4}")
for ks in range(7, NE): e_read(ks)
A("s_waitcnt vmcnt(0)")
for p in range(8):
    A(f"v_lshlrev_b32 v{EX+2*p}, 16, v{EO+p}")
    A(f"v_and_b32 v{EX+2*p+1}, 0xffff0000, v{EO+p}")
poll(8, 9, "o")
stamp(13)
for ks in range(16):
    A.vmem(f"buffer_load_dwordx4 {v(EO+4*ks,4)}, v6, {s(rWS,4)}, s{sCUR} offen sc1", f"o{ks}")
    if ks < 15: A(f"s_add_u32 s{sCUR}, s{sCUR}, 4096")
for ks in range(16):
    A.wait(vm=[f"o{ks}"], lg=[f"e{ks}"])
    b = EA + 16 * (ks % NE)
    for t4 in range(4):
        A(f"v_mfma_f32_16x16x32_bf16 {v(EACC+4*t4,4)}, {v(b+4*t4,4)}, {v(EO+4*ks,4)}, {v(EACC+4*t4,4) if ks else 0}")
    if ks + NE < 16: e_read(ks + NE)
stamp(14)
A("s_barrier")
for t4 in range(4):
    A.lds(f"ds_read_b128 {v(EO+4*t4,4)}, v12 offset:{64*t4}", f"g{t4}")
A("s_nop 3")
for t4 in range(4):
    A.wait(lg=[f"g{t4}"])
    for q in range(2):
        r = 4 * t4 + 2 * q
        A(f"v_pk_fma_f32 {v(EX+r,2)}, {v(EACC+r,2)}, {v(EO+r,2)}, {v(EX+r,2)}")
for p in range(8):
    A(f"v_cvt_pk_bf16_f32 v{EO+16+p}, v{EX+2*p}, v{EX+2*p+1}")
A("s_nop 0")
for P in range(2):
    b = EO + 16 + 4 * P
    A(f"v_permlane16_swap_b32 v{b}, v{b+2}")
    A(f"v_permlane16_swap_b32 v{b+1}, v{b+3}")
for P in range(2):
    A(f"buffer_store_dwordx4 {v(EO+16+4*P,4)}, v11, {s(rOUT,4)}, s{sT+9} offen offset:{64*P}")
if OPT["stamps"]:
    A("s_waitcnt vmcnt(0)")
    stamp(15); stamp_rt(16); stamp_flush()
A("s_endpgm")

A.label("L_slow")
M0_, M1_ = 9, 10
CI = OA
A(f"""
s_waitcnt lgkmcnt(0)
v_mov_b32 v{M0_}, 0xff800000
v_mov_b32 v{M1_}, 0xff800000
s_mov_b32 s{sCUR}, {WS_KV}
s_mov_b32 s{sLOOP}, 64
""")
A.label("L_slow1")
A(f"""
buffer_load_dwordx4 {v(KB,4)}, v{vKO}, {s(rWS,4)}, s{sCUR} offen sc1
s_add_u32 s{sCUR}, s{sCUR}, 2048
s_waitcnt vmcnt(0)
v_mfma_f32_32x32x16_bf16 {v(SB,16)}, {v(KB,4)}, {v(QF+24,4)}, 0
v_mfma_f32_32x32x16_bf16 {v(SB+16,16)}, {v(KB,4)}, {v(QF+28,4)}, 0
s_nop 15
""")
for q in range(8):
    A(f"v_max3_f32 v{M0_}, v{M0_}, v{SB+2*q}, v{SB+2*q+1}")
for q in range(8):
    A(f"v_max3_f32 v{M1_}, v{M1_}, v{SB+16+2*q}, v{SB+16+2*q+1}")
A(f"""
s_sub_u32 s{sLOOP}, s{sLOOP}, 1
s_cmp_lg_u32 s{sLOOP}, 0
s_cbranch_scc1 L_slow1
v_mov_b32 v11, v{M0_}
v_mov_b32 v12, v{M1_}
s_nop 1
v_permlane32_swap_b32 v{M0_}, v11
v_permlane32_swap_b32 v{M1_}, v12
s_nop 1
v_max_f32 v{M0_}, v{M0_}, v11
v_max_f32 v{M1_}, v{M1_}, v12
""")
for r in range(16):
    A(f"v_sub_f32 v{CI+r}, 0, v{M0_}")
    A(f"v_sub_f32 v{CI+16+r}, 0, v{M1_}")
for r in range(32): A(f"v_mov_b32 v{OA+96+r}, 0")
A(f"""
s_mov_b32 s{sCUR}, {WS_KV}
s_mov_b32 s{sLOOP}, 64
""")
A.label("L_slow2")
for x in kv_load(0): A(x)
A(f"""
s_waitcnt vmcnt(0)
v_mfma_f32_32x32x16_bf16 {v(SB,16)}, {v(KB,4)}, {v(QF+24,4)}, {v(CI,16)}
v_mfma_f32_32x32x16_bf16 {v(SB+16,16)}, {v(KB,4)}, {v(QF+28,4)}, {v(CI+16,16)}
s_nop 15
""")
for r in range(32): A(f"v_exp_f32 v{SB+r}, v{SB+r}")
A("s_nop 1")
for t in range(2):
    A(f"v_smfmac_f32_32x32x32_bf16 {v(OA+96+16*t,16)}, {v(VB,4)}, {v(SB+16*t,8)}, v{vIDX}")
    A(f"v_smfmac_f32_32x32x32_bf16 {v(OA+96+16*t,16)}, {v(VB+4,4)}, {v(SB+16*t+8,8)}, v{vIDX}")
A(f"""
s_nop 7
s_sub_u32 s{sLOOP}, s{sLOOP}, 1
s_cmp_lg_u32 s{sLOOP}, 0
s_cbranch_scc1 L_slow2
s_nop 15
s_branch L_norm
""")

A.reset()
A.label("L_helper")
A(f"""
s_setprio 2
s_cmp_lg_u32 s{sW}, 3
s_cbranch_scc1 L_nokv
""")
A.c("---------------- K or V for 16 rows ----------------")
KW = 16; KX = 80; KD = 144
A(f"""
v_and_b32 v2, 15, v1
v_lshrrev_b32 v3, 4, v1
v_lshlrev_b32 v4, 3, v2
v_lshl_or_b32 v4, v3, 8, v4
v_add_u32 v4, {WKV}, v4
s_lshr_b32 s{sT}, s{sJ}, 1
s_mul_i32 s{sT+1}, s{sT}, {16*XNS}
v_mul_u32_u24 v5, {XNS}, v2
v_lshl_add_u32 v5, v3, 4, v5
v_add_u32 v5, s{sT+1}, v5
""")
for ks in range(16):
    A.lds(f"ds_read_b64_tr_b16 {v(KW+4*ks,2)}, v4 offset:{1024*ks}", f"k{ks}")
    A.lds(f"ds_read_b64_tr_b16 {v(KW+4*ks+2,2)}, v4 offset:{1024*ks+128}", f"k{ks}")
    A.lds(f"ds_read_b128 {v(KX+4*ks,4)}, v5 offset:{64*ks}", f"k{ks}")
A(f"""
s_lshl_b32 s{sT+2}, s{sRB}, 1
s_lshr_b32 s{sT+3}, s{sJ}, 2
s_add_u32 s{sT+2}, s{sT+2}, s{sT+3}
s_lshl_b32 s{sT+2}, s{sT+2}, 11
s_add_u32 s{sT+2}, s{sT+2}, {WS_KV}
s_and_b32 s{sT+3}, s{sT}, 1
s_lshl_b32 s{sT+4}, s{sRB}, 3
s_add_u32 s{sT+4}, s{sT+4}, s{sJ}
s_lshl_b32 s{sT+4}, s{sT+4}, 6
s_add_u32 s{sT+4}, s{sT+4}, {WS_FKV}
v_lshlrev_b32 v8, 4, v2
v_and_b32 v9, 1, v3
v_lshrrev_b32 v10, 1, v3
s_waitcnt lgkmcnt(0)
s_bitcmp1_b32 s{sJ}, 0
s_cbranch_scc1 L_isv
""")
for ks in range(16):
    A(f"v_mfma_f32_16x16x32_bf16 {v(KD,4)}, {v(KW+4*ks,4)}, {v(KX+4*ks,4)}, {v(KD,4) if ks else 0}")
A(f"""
v_lshl_or_b32 v8, v9, 9, v8
v_lshl_or_b32 v8, v10, 3, v8
s_lshl_b32 s{sT+3}, s{sT+3}, 8
s_branch L_kvst
""")
A.label("L_isv")
for ks in range(16):
    A(f"v_mfma_f32_16x16x32_bf16 {v(KD,4)}, {v(KX+4*ks,4)}, {v(KW+4*ks,4)}, {v(KD,4) if ks else 0}")
A(f"""
v_lshl_or_b32 v8, v10, 8, v8
v_lshl_or_b32 v8, v9, 3, v8
s_lshl_b32 s{sT+3}, s{sT+3}, 9
s_add_u32 s{sT+3}, s{sT+3}, 1024
""")
A.label("L_kvst")
A(f"""
s_add_u32 s{sT+2}, s{sT+2}, s{sT+3}
s_nop 4
v_cvt_pk_bf16_f32 v{KD+4}, v{KD}, v{KD+1}
v_cvt_pk_bf16_f32 v{KD+5}, v{KD+2}, v{KD+3}
buffer_store_dwordx2 {v(KD+4,2)}, v8, {s(rWS,4)}, s{sT+2} offen sc1
""")
stamp(4)
A("s_waitcnt vmcnt(0)")
set_flag(sT + 4, 9, 10)
stamp(5)
A.label("L_nokv")
A.reset()
A.c("---------------- FFN up: unit u = 8*hw + j (64 hidden columns x 64 rows) ----------------")
ACC = 192; POOL = 16
vA0, vA1, vB0, vD0, vD1 = 2, 3, 4, 5, 8
BIA = 160
tr_common(9, 10)
A(f"""
s_lshl_b32 s{sU}, s{sW}, 3
s_add_u32 s{sU}, s{sU}, s{sJ}
s_lshl_b32 s{sRING}, s{sW}, 14
s_add_u32 s{sRING}, s{sRING}, {RING}
v_and_b32 v10, 32, v1
v_lshl_or_b32 v{vA0}, v10, 5, v9
v_add_u32 v{vA0}, s{sRING}, v{vA0}
v_xor_b32 v{vA1}, 64, v{vA0}
v_and_b32 v11, 31, v1
v_mul_u32_u24 v{vB0}, {XNS}, v11
v_lshrrev_b32 v12, 1, v10
v_add_u32 v{vB0}, v{vB0}, v12
v_lshrrev_b32 v12, 3, v1
v_mul_u32_u24 v{vD0}, 3584, v12
v_and_b32 v12, 0x70, v6
v_add_u32 v{vD0}, v{vD0}, v12
v_add_u32 v{vD1}, {8*3584-1024}, v{vD0}
v_lshlrev_b32 v11, 1, v11
v_lshl_or_b32 v11, v10, 10, v11
s_lshl_b32 s{sCUR}, s{sU}, 7
s_lshr_b32 s{sT}, s{sW}, 1
s_lshl_b32 s{sT}, s{sT}, 6
s_lshl_b32 s{sT+1}, s{sJ}, 7
s_add_u32 s{sT+1}, s{sT+1}, s{sT}
""")
A.vmem(f"buffer_load_ushort v{BIA}, v11, {s(rB1,4)}, s{sCUR} offen", "bias")
A.vmem(f"buffer_load_ushort v{BIA+4}, v11, {s(rB1,4)}, s{sCUR} offen offset:64", "bias")
A.vmem(f"buffer_load_ushort v13, v11, {s(rB2,4)}, s{sT+1} offen", "bias")
for r in (1, 2, 3, 5, 6, 7, 9, 10, 11): A(f"v_mov_b32 v{BIA+r}, 0")
A(f"""
v_mov_b32 v{BIA+8}, 0x3f80
s_mul_i32 s{sT+2}, s{sRB}, {HRB}
s_add_u32 s{sT+2}, s{sT+2}, {WS_HIM}
s_lshl_b32 s{sT+3}, s{sRB}, 11
s_add_u32 s{sT+3}, s{sT+3}, {WS_FH}
""")
A.wait(vm="all")
stamp(6)
A("s_barrier")
A(f"""
s_setprio 0
s_cmp_ge_u32 s{sU}, 28
s_cbranch_scc1 L_upskip
""")
def ring_dma(srd, ks, step, tag):
    A(f"s_add_u32 m0, s{sRING}, {2048*(ks%8)}")
    if ks: A(f"s_add_u32 s{sCUR}, s{sCUR}, {step}")
    else: A("s_nop 0")
    A.vmem(f"buffer_load_dwordx4 v{vD0}, {s(srd,4)}, s{sCUR} offen lds", tag)
    A.vmem(f"buffer_load_dwordx4 v{vD1}, {s(srd,4)}, s{sCUR} offen offset:1024 lds", tag)
def up_read(ks):
    b = POOL + 16 * (ks % 2); o = 2048 * (ks % 8)
    A.lds(f"ds_read_b64_tr_b16 {v(b,2)}, v{vA0} offset:{o}", f"u{ks}")
    A.lds(f"ds_read_b64_tr_b16 {v(b+2,2)}, v{vA0} offset:{o+512}", f"u{ks}")
    A.lds(f"ds_read_b128 {v(b+8,4)}, v{vB0} offset:{32*ks}", f"u{ks}")
    A.lds(f"ds_read_b128 {v(b+12,4)}, v{vB0} offset:{32*XNS+32*ks}", f"u{ks}")
    A.lds(f"ds_read_b64_tr_b16 {v(b+4,2)}, v{vA1} offset:{o}", f"u{ks}")
    A.lds(f"ds_read_b64_tr_b16 {v(b+6,2)}, v{vA1} offset:{o+512}", f"u{ks}")
for ks in range(8): ring_dma(rW1, ks, 16 * 3584, f"w{ks}")
for q in range(4):
    A(f"v_mfma_f32_32x32x16_bf16 {v(ACC+16*q,16)}, {v(BIA+4*(q//2),4)}, {v(BIA+8,4)}, 0")
A.wait(vm=["w0"])
up_read(0)
for ks in range(32):
    if ks + 1 < 32:
        A.wait(vm=[f"w{ks+1}"])
        up_read(ks + 1)
    A.wait(lg=[f"u{ks}"])
    if ks + 8 < 32: ring_dma(rW1, ks + 8, 16 * 3584, f"w{ks+8}")
    b = POOL + 16 * (ks % 2)
    for q in range(4):
        A(f"v_mfma_f32_32x32x16_bf16 {v(ACC+16*q,16)}, {v(b+4*(q//2),4)}, {v(b+8+4*(q%2),4)}, {v(ACC+16*q,16)}")
stamp(7)
A(f"""
s_lshl_b32 s{sT+4}, s{sU}, 13
s_add_u32 s{sT+4}, s{sT+4}, s{sT+2}
s_add_u32 s{sT+5}, s{sT+4}, 4096
s_nop 8
s_setprio 2
""")
for q in range(4):
    ct, rt = q // 2, q % 2
    for half in range(2):
        a = ACC + 16 * q + 8 * half
        for r in range(8): A(f"v_max_f32 v{a+r}, 0, v{a+r}")
        for p in range(4): A(f"v_pk_mul_f32 {v(a+2*p,2)}, {v(a+2*p,2)}, {v(a+2*p,2)}")
        d = POOL + 32 + 8 * q + 4 * half
        for p in range(4): A(f"v_cvt_pk_bf16_f32 v{d+p}, v{a+2*p}, v{a+2*p+1}")
        A.vmem(f"buffer_store_dwordx4 {v(d,4)}, v7, {s(rWS,4)}, s{sT+4+ct} offen offset:{2048*half+1024*rt} sc1")
A.label("L_upskip")
A.reset()
A.c("---------------- FFN down: K range 448*hw.., output tile 64 x 64 ----------------")
vH0, vH1 = 4, 11
A(f"""
s_setprio 2
s_lshr_b32 s{sT+6}, s{sW}, 1
s_and_b32 s{sT+7}, s{sW}, 1
s_lshl_b32 s{sT+8}, s{sT+6}, 6
v_and_b32 v10, 32, v1
v_lshl_or_b32 v{vA0}, v10, 4, v9
v_xor_b32 v{vA0}, s{sT+8}, v{vA0}
v_add_u32 v{vA0}, s{sRING}, v{vA0}
v_xor_b32 v{vA1}, 64, v{vA0}
v_mov_b32 v{vD0}, v6
v_add_u32 v{vD1}, {8*1024-1024}, v6
s_lshl_b32 s{sT+9}, s{sT+7}, 10
v_add_u32 v{vH0}, s{sT+9}, v7
v_xor_b32 v{vH1}, 0x400, v{vH0}
s_mul_i32 s{sCUR}, s{sW}, {448*1024}
s_lshl_b32 s{sT+10}, s{sJ}, 7
s_add_u32 s{sCUR}, s{sCUR}, s{sT+10}
s_mul_i32 s{sCUR2}, s{sW}, {28*2048}
s_add_u32 s{sCUR2}, s{sCUR2}, s{sT+2}
s_lshl_b32 s{sT+11}, s{sU}, 6
s_add_u32 s{sT+11}, s{sT+11}, s{sT+3}
""")
A(f"""
s_mul_i32 s{sT+12}, s{sW}, 7
v_min_u32 v12, 6, v1
v_add_u32 v12, s{sT+12}, v12
v_and_b32 v10, 3, v1
v_lshl_add_u32 v10, v10, 3, s{sJ}
v_cmp_gt_u32 vcc, 8, v1
v_mov_b32 v{BIA}, v13
s_nop 0
v_cndmask_b32 v12, v10, v12, vcc
v_lshl_add_u32 v12, v12, 6, s{sT+3}
s_waitcnt vmcnt(0)
""")
set_flag(sT + 11, 10, 13)
stamp(8)
for ks in range(8): ring_dma(rW2, ks, 16 * 1024, f"w{ks}")
A(f"""
v_lshrrev_b32 v10, 3, v1
v_lshlrev_b32 v14, 10, v10
v_and_b32 v10, 6, v10
v_and_b32 v13, 7, v1
v_xor_b32 v10, v10, v13
v_lshl_or_b32 v14, v10, 4, v14
v_mfma_f32_32x32x16_bf16 {v(ACC,16)}, {v(BIA,4)}, {v(BIA+8,4)}, 0
""")
poll(12, 10, "h", sleep=2)
stamp(9)
A("s_setprio 0")
NR = 11; DA = POOL; DB = POOL + 88
D1 = OPT["d1"]
def h_load(ks):
    b = DB + 8 * (ks % NR)
    if ks: A(f"s_add_u32 s{sCUR2}, s{sCUR2}, 2048")
    A.vmem(f"buffer_load_dwordx4 {v(b,4)}, v{vH0}, {s(rWS,4)}, s{sCUR2} offen sc1", f"h{ks}")
    A.vmem(f"buffer_load_dwordx4 {v(b+4,4)}, v{vH1}, {s(rWS,4)}, s{sCUR2} offen sc1", f"h{ks}")
def dn_read(ks):
    b = DA + 8 * (ks % NR); o = 2048 * (ks % 8)
    A.lds(f"ds_read_b64_tr_b16 {v(b,2)}, v{vA0} offset:{o}", f"d{ks}")
    A.lds(f"ds_read_b64_tr_b16 {v(b+2,2)}, v{vA0} offset:{o+1024}", f"d{ks}")
    A.lds(f"ds_read_b64_tr_b16 {v(b+4,2)}, v{vA1} offset:{o}", f"d{ks}")
    A.lds(f"ds_read_b64_tr_b16 {v(b+6,2)}, v{vA1} offset:{o+1024}", f"d{ks}")
def dn_mfma(ks):
    a = DA + 8 * (ks % NR); b = DB + 8 * (ks % NR)
    for q in range(4):
        A(f"v_mfma_f32_32x32x16_bf16 {v(ACC+16*q,16)}, {v(a+4*(q//2),4)}, {v(b+4*(q%2),4)}, {v(ACC+16*q,16) if (ks or q == 0) else 0}")
for ks in range(NR): h_load(ks)
A(f"""
s_lshl_b32 s{sT+13}, s{sW}, 17
s_add_u32 s{sT+13}, s{sT+13}, s{sT+10}
s_lshl_b32 s{sT+14}, s{sW}, 14
""")
for i in range(16):
    if i % 4 == 0:
        A(f"s_add_u32 m0, s{sT+14}, {WO + 1024*i}")
        if i: A(f"s_add_u32 s{sT+13}, s{sT+13}, {8192 + 3072}")
        else: A("s_nop 0")
    else:
        A(f"s_add_u32 s{sT+13}, s{sT+13}, 7168")
    A.vmem(f"buffer_load_dwordx4 v14, {s(rWO,4)}, s{sT+13} offen offset:{1024*(i%4)} lds", "wo")
dn_read(0)
for ks in range(D1):
    A.wait(vm=[f"w{ks+1}"])
    dn_read(ks + 1)
    A.wait(vm=[f"h{ks}"], lg=[f"d{ks}"])
    if ks + 8 < 28: ring_dma(rW2, ks + 8, 16 * 1024, f"w{ks+8}")
    dn_mfma(ks)
    if ks + NR < 28: h_load(ks + NR)
for ks in range(D1, 28):
    if ks + 1 < 28:
        A.wait(vm=[f"w{ks+1}"])
        dn_read(ks + 1)
    if ks + 8 < 28:
        A.wait(lg=[f"d{ks}"])
        ring_dma(rW2, ks + 8, 16 * 1024, f"w{ks+8}")
A.wait(vm="all", lg="all")
stamp(10)
A("s_barrier")
A("s_barrier")
stamp(11)
for ks in range(D1, 28): dn_mfma(ks)
A.c("---------------- reduce the K-split partials, silu, hand the gate tile over ----------------")
for sl in range(1, 4):
    A(f"""
    s_xor_b32 s{sT}, s{sW}, {sl}
    s_mul_i32 s{sT}, s{sT}, 12288
    s_add_u32 s{sT}, s{sT}, {GRED + 4096*(sl-1)}
    v_add_u32 v{1+sl}, s{sT}, v7
    """)
A(f"""
s_mul_i32 s{sT}, s{sW}, 12288
s_add_u32 s{sT}, s{sT}, {GRED}
v_add_u32 v5, s{sT}, v7
s_mul_i32 s{sT+1}, s{sT+7}, {32*GIS}
s_lshl_b32 s{sT+4}, s{sT+6}, 7
s_add_u32 s{sT+1}, s{sT+1}, s{sT+4}
s_add_u32 s{sT+1}, s{sT+1}, {GIM}
v_and_b32 v8, 31, v1
v_mul_u32_u24 v8, {GIS}, v8
v_and_b32 v9, 32, v1
v_lshrrev_b32 v9, 1, v9
v_add3_u32 v8, v8, v9, s{sT+1}
""")
lds_spin(0, 4, 9, 10, "a")
for sl in range(1, 4):
    for q in range(4):
        A.lds(f"ds_write_b128 v{1+sl}, {v(ACC+16*sl+4*q,4)} offset:{1024*q}")
A.wait(lg="all")
lds_signal(4, 9, 10)
lds_spin(4, 4, 9, 10, "b")
stamp(12)
for q in range(4):
    for sl in range(1, 4):
        A.lds(f"ds_read_b128 {v(POOL+16*(sl-1)+4*q,4)}, v5 offset:{4096*(sl-1)+1024*q}", f"g{q}")
A(f"s_mov_b32 s{sT+5}, {hex(f2u(-math.log2(math.e)))}")
T = POOL + 48
for q in range(4):
    A.wait(lg=[f"g{q}"])
    for sl in range(1, 4):
        for p in range(2):
            r = 4 * q + 2 * p
            A(f"v_pk_add_f32 {v(ACC+r,2)}, {v(ACC+r,2)}, {v(POOL+16*(sl-1)+r,2)}")
    for r in range(4 * q, 4 * q + 4): A(f"v_mul_f32 v{T+r}, s{sT+5}, v{ACC+r}")
    for r in range(4 * q, 4 * q + 4): A(f"v_exp_f32 v{T+r}, v{T+r}")
    for r in range(4 * q, 4 * q + 4): A(f"v_add_f32 v{T+r}, 1.0, v{T+r}")
    for r in range(4 * q, 4 * q + 4): A(f"v_rcp_f32 v{T+r}, v{T+r}")
    for r in range(4 * q, 4 * q + 4): A(f"v_mul_f32 v{T+r}, v{ACC+r}, v{T+r}")
    A.lds(f"ds_write_b128 v8, {v(T+4*q,4)} offset:{32*q}")
A.wait(lg="all")
stamp(13)
if OPT["stamps"]:
    stamp_rt(16); stamp_flush()
A("s_barrier")
A.label("L_end")

head = open(f"cdna_kernels/{NAME}.s.ref").read()
pre = head[:head.index("; @launch")]
out = pre + f"""; @launch grid=(256,1,1) block=(512,1,1) lds={LDS_BYTES}
.amdgcn_target "amdgcn-amd-amdhsa--gfx950"
.text
.globl {NAME}_kernel
.p2align 8
.type {NAME}_kernel,@function
{NAME}_kernel:
""" + A.text() + f"""s_endpgm
.section .rodata,"a"
.p2align 6
.amdhsa_kernel {NAME}_kernel
  .amdhsa_next_free_vgpr 256
  .amdhsa_next_free_sgpr 96
  .amdhsa_accum_offset 256
  .amdhsa_group_segment_fixed_size 0
  .amdhsa_kernarg_size 104
  .amdhsa_user_sgpr_count 2
  .amdhsa_user_sgpr_kernarg_segment_ptr 1
  .amdhsa_system_sgpr_workgroup_id_x 1
.end_amdhsa_kernel
"""
open(sys.argv[1], "w").write(out)
```

```python
import sys, math, struct
from asmlib import Asm, v, s

NAME = "recurrent_scan__grouped_kv_mqa__dense_activation_squared_relu__prompt"
OPT = dict(stamps=0, pstamp=0, force_slow=0, lay=(1, 4, 7), d1=17, codepf=1, touch1=1, touch2=1, outsc="sc1",
           hla=3, kvfirst=1, bar4=3, nfly=3, stq=2, pre=11, cap=8, orw=(12, 13, 14))
for a_ in sys.argv[2:]:
    k_, x_ = a_.split("=")
    assert k_ in OPT, k_
    OPT[k_] = eval(x_)

def f2u(x): return struct.unpack("<I", struct.pack("<f", x))[0]

WS_FKV = 0x1000
WS_FH = 0x10000
WS_FO = 0x20000
WS_KV = 0x40000; KVS = 4096
WS_OIM = 0x100000
WS_HIM = 0x400000
WS_STAMP = 0xC00000
WS_SIZE = 0x1000000
HRB = 229376
XN = 0; XNS = 1040
WO = 0
WQ = 66560; ORED = 66560; GRED = 66560
WKV = 132096; QX = 148480
RING = 121856; NS = 5; RINGB = NS * 2048
GIM = RING; GIS = 272
CNT = 162816
LDS_BYTES = 162880
sW8, sRB, sJ, sW, sTAG = 3, 4, 5, 6, 7
rX, rWQ, rWKV, rWO, rW1, rB1, rW2, rB2, rOUT, rWS = 8, 12, 16, 20, 24, 28, 32, 36, 40, 44
sPC = 48
sG, sQ, sX, sJ7, sXO = 50, 51, 52, 53, 54
sT = 56
sCW, sBW, sLW, sCH, sBH, sLH, sCB, sWOS = 72, 73, 74, 75, 76, 77, 78, 79
sSEG = 80
sCNT, sCUR, sWOD, sRING, sU, sLOOP = 84, 85, 86, 87, 88, 89
SPIN = 400000
OOB = 0x40000000

A = Asm()
vST = 15
def stamp(idx):
    if not OPT["stamps"]: return
    if OPT["stamps"] != 1 and idx not in OPT["stamps"] and idx != 31: return
    p = A.prio
    A("s_memtime s[90:91]\ns_memrealtime s[92:93]\ns_waitcnt lgkmcnt(0)")
    if p is not None: A("s_setprio 3")
    A(f"v_writelane_b32 v{vST}, s90, {idx}\nv_writelane_b32 v{vST}, s92, {idx+32}")
    if p is not None: A(f"s_setprio {p}")
    A.lg = []
def stamp_flush():
    if not OPT["stamps"]: return
    A(f"""
    s_lshl_b32 s92, s2, 3
    s_add_u32 s92, s92, s{sW8}
    s_lshl_b32 s92, s92, 8
    s_add_u32 s92, s92, {WS_STAMP}
    v_lshlrev_b32 v14, 2, v1
    buffer_store_dword v{vST}, v14, s[{rWS}:{rWS+3}], s92 offen
    """)

def poll(voff, vtmp, name, sleep=0):
    A(f"s_mov_b32 s{sCNT}, {SPIN}")
    A.label(f"L_poll_{name}")
    A(f"""
    buffer_load_dword v{vtmp}, v{voff}, s[{rWS}:{rWS+3}], 0 offen sc1
    s_waitcnt vmcnt(0)
    v_cmp_ne_u32 vcc, s{sTAG}, v{vtmp}
    s_cbranch_vccz L_done_{name}
    """)
    if sleep: A(f"s_sleep {sleep}")
    A(f"""
    s_sub_u32 s{sCNT}, s{sCNT}, 1
    s_cmp_lg_u32 s{sCNT}, 0
    s_cbranch_scc1 L_poll_{name}
    """)
    A.label(f"L_done_{name}")
    A.vm = []

def flag_prep(vt0, vt1):
    A(f"v_mov_b32 v{vt0}, s{sTAG}\nv_mov_b32 v{vt1}, 0")
def flag_store(soff, vt0, vt1):
    A("s_mov_b64 exec, 1")
    A.vmem(f"buffer_store_dword v{vt0}, v{vt1}, s[{rWS}:{rWS+3}], {soff} offen sc1")
    A("s_mov_b64 exec, -1")

vCNT, vONE = 11, 12
def lds_signal(off):
    A("s_mov_b64 exec, 1")
    A.lds(f"ds_add_u32 v{vCNT}, v{vONE} offset:{off}")
    A("s_mov_b64 exec, -1")

def lds_spin(off, n, vt0, name):
    A(f"s_mov_b32 s{sCNT}, {SPIN * 4}")
    A.label(f"L_spin_{name}")
    A(f"""
    ds_read_b32 v{vt0}, v{vCNT} offset:{off}
    s_waitcnt lgkmcnt(0)
    v_cmp_ne_u32 vcc, {n}, v{vt0}
    s_cbranch_vccz L_spun_{name}
    s_sub_u32 s{sCNT}, s{sCNT}, 1
    s_cmp_lg_u32 s{sCNT}, 0
    s_cbranch_scc1 L_spin_{name}
    """)
    A.label(f"L_spun_{name}")
    A.lg = []

def tr_common(dst, t0):
    A(f"""
    v_and_b32 v{dst}, 3, v1
    v_lshlrev_b32 v{dst}, 3, v{dst}
    v_and_b32 v{t0}, 16, v1
    v_lshl_or_b32 v{dst}, v{t0}, 1, v{dst}
    v_and_b32 v{t0}, 8, v1
    v_lshl_or_b32 v{dst}, v{t0}, 3, v{dst}
    v_and_b32 v{t0}, 12, v1
    v_lshl_or_b32 v{dst}, v{t0}, 5, v{dst}
    """)

def dma_rows(srd, voff, ssrc, sdst, ldsbase, n, tag):
    for i in range(n):
        if i % 4 == 0:
            A(f"s_add_u32 m0, s{sdst}, {ldsbase + 1024*i}")
            if i: A(f"s_add_u32 s{ssrc}, s{ssrc}, {8192 + 3072}")
            else: A("s_nop 0")
        else:
            A(f"s_add_u32 s{ssrc}, s{ssrc}, 7168")
        A.vmem(f"buffer_load_dwordx4 v{voff}, {s(srd,4)}, s{ssrc} offen offset:{1024*(i%4)} lds", tag)

def touch(srd, vt, vd, per_wg, nl):
    A(f"s_mul_i32 s{sT+15}, s2, {per_wg}")
    A(f"s_mov_b32 exec_lo, {hex((1 << min(nl, 32)) - 1)}")
    A(f"s_mov_b32 exec_hi, {hex((1 << max(nl - 32, 0)) - 1)}")
    A.vmem(f"buffer_load_dword v{vd}, v{vt}, {s(srd,4)}, s{sT+15} offen", "touch")
    A("s_mov_b64 exec, -1")

def cap_vm(n):
    if len(A.vm) > n:
        A(f"s_waitcnt vmcnt({n})"); A.vm = A.vm[len(A.vm) - n:] if n else []

XR = 28; CR = 60; LA = 124
def x_loads():
    for i in range(8):
        A.vmem(f"buffer_load_dwordx4 {v(XR+4*i,4)}, v5, {s(rX,4)}, s{sXO} offen offset:{128*i}", f"x{i}")
def common_setup():
    A(f"""
    s_load_dwordx2 s[{rWO}:{rWO+1}], s[0:1], 32
    s_load_dwordx2 s[{rB2}:{rB2+1}], s[0:1], 72
    s_load_dwordx2 s[{rOUT}:{rOUT+1}], s[0:1], 80
    """)
    for r, n in [(rWO, 524288), (rW1, 1835008), (rB1, 3584), (rW2, 1835008), (rB2, 1024), (rOUT, 2097152)]:
        A(f"s_mov_b32 s{r+2}, {n}\ns_mov_b32 s{r+3}, 0x20000")
    A(f"""
    s_mul_i32 s{sT+5}, s{sG}, {8*XNS}
    v_mul_u32_u24 v8, {XNS}, v3
    v_add3_u32 v8, v8, v4, s{sT+5}
    v_mov_b32 v{vONE}, 1
    s_mov_b32 s{sT+6}, 0x3f803f80
    s_mov_b32 s{sT+7}, 0x00003f80
    s_mov_b32 s{sT+8}, 0x3f800000
    s_mov_b32 s{sT+9}, {hex(f2u(1.0/512))}
    """)
def red8(r):
    A(f"""
    v_add_f32_dpp v{r}, v{r}, v{r} quad_perm:[1,0,3,2] row_mask:0xf bank_mask:0xf
    s_nop 1
    v_add_f32_dpp v{r}, v{r}, v{r} quad_perm:[2,3,0,1] row_mask:0xf bank_mask:0xf
    s_nop 1
    v_add_f32_dpp v{r}, v{r}, v{r} row_half_mirror row_mask:0xf bank_mask:0xf
    """)
def layernorm(after_first=None):
    A.c("---------------- LayerNorm of 8 rows (s[62:65] hold constants) ----------------")
    A(f"v_mov_b32 v{LA}, 0")
    stamp(20)
    for i in range(8):
        A.wait(vm=[f"x{i}"])
        if i == 0:
            if after_first: after_first()
            stamp(2)
        for d in range(4):
            A(f"v_dot2c_f32_bf16 v{LA}, s{sT+6}, v{XR+4*i+d}")
    stamp(16)
    A("s_nop 2")
    red8(LA)
    A(f"v_mul_f32 v{LA}, {hex(f2u(-1.0/512))}, v{LA}")
    for p in range(32):
        A(f"v_dot2_f32_bf16 v{CR+2*p}, v{XR+p}, s{sT+7}, v{LA}")
        A(f"v_dot2_f32_bf16 v{CR+2*p+1}, v{XR+p}, s{sT+8}, v{LA}")
    A(f"v_pk_mul_f32 {v(LA+2,2)}, {v(CR,2)}, {v(CR,2)}")
    A(f"v_pk_mul_f32 {v(LA,2)}, {v(CR+2,2)}, {v(CR+2,2)}")
    for p in range(2, 32):
        a = LA + 2 * ((p + 1) % 2)
        A(f"v_pk_fma_f32 {v(a,2)}, {v(CR+2*p,2)}, {v(CR+2*p,2)}, {v(a,2)}")
    A(f"""
    v_pk_add_f32 {v(LA,2)}, {v(LA,2)}, {v(LA+2,2)}
    s_nop 0
    v_add_f32 v{LA}, v{LA}, v{LA+1}
    v_mov_b32 v{LA+1}, {hex(f2u(1e-5))}
    s_nop 0
    """)
    red8(LA)
    A(f"""
    v_fma_f32 v{LA}, v{LA}, s{sT+9}, v{LA+1}
    v_rsq_f32 v{LA}, v{LA}
    s_nop 0
    """)
    for i in range(8):
        for d in range(4):
            p = 4 * i + d
            A(f"v_pk_mul_f32 {v(CR+2*p,2)}, {v(CR+2*p,2)}, {v(LA,2)} op_sel_hi:[1,0]")
        for d in range(4):
            p = 4 * i + d
            A(f"v_cvt_pk_bf16_f32 v{XR+p}, v{CR+2*p}, v{CR+2*p+1}")
        A.lds(f"ds_write_b128 v8, {v(XR+4*i,4)} offset:{128*i}")
    stamp(17)

def prologue():
    A(f"""
    s_cmp_ge_u32 s2, 256
    s_cbranch_scc1 L_end
    {"s_memrealtime s[94:95]" if OPT["stamps"] else ""}
    {"s_memtime s[96:97]" if OPT["stamps"] else ""}
    s_lshr_b32 s{sT}, s2, 3
    s_and_b32 s{sT+1}, s2, 8
    s_add_u32 s{sT+1}, s{sT+1}, 16
    s_load_dwordx2 s[{rX}:{rX+1}], s[0:1], 0
    s_load_dwordx2 s[{rWKV}:{rWKV+1}], s[0:1], s{sT+1}
    s_load_dwordx2 s[{rWQ}:{rWQ+1}], s[0:1], 8
    s_load_dwordx2 s[{rWS}:{rWS+1}], s[0:1], 96
    s_load_dwordx2 s[{rW1}:{rW1+1}], s[0:1], 48
    s_load_dwordx2 s[{rB1}:{rB1+1}], s[0:1], 56
    s_load_dwordx2 s[{rW2}:{rW2+1}], s[0:1], 64
    v_lshrrev_b32 v2, 6, v0
    v_and_b32 v1, 63, v0
    s_and_b32 s{sJ}, s{sT}, 7
    v_readfirstlane_b32 s{sW8}, v2
    """)
    if OPT["codepf"]:
        A(f"""
        s_getpc_b64 s[{sPC}:{sPC+1}]
        s_lshl_b32 s{sT+2}, s{sT}, 10
        v_lshl_add_u32 v3, v0, 7, s{sT+2}
        v_min_u32 v3, L_end-{NAME}_kernel-256, v3
        v_cmp_gt_u32 vcc, 8, v0
        s_and_saveexec_b64 s[{sT+4}:{sT+5}], vcc
        s_cbranch_execz L_nopf
        global_load_dword v27, v3, s[{sPC}:{sPC+1}]
        """)
        A.label("L_nopf")
        A("s_mov_b64 exec, -1")
    A(f"""
    v_mov_b64 v[12:13], 0
    v_mov_b32 v{vCNT}, {CNT}
    ds_write_b64 v{vCNT}, v[12:13]
    ds_write_b32 v{vCNT}, v12 offset:8
    s_lshr_b32 s{sQ}, s{sT}, 3
    s_and_b32 s{sX}, s2, 7
    s_lshl_b32 s{sRB}, s{sX}, 2
    s_add_u32 s{sRB}, s{sRB}, s{sQ}
    s_and_b32 s{sW}, s{sW8}, 3
    s_xor_b32 s{sG}, s{sW8}, 4
    s_xor_b32 s{sG}, s{sG}, s{sJ}
    """)
    for r, n in [(rX, 2097152), (rWKV, 16384), (rWQ, 524288), (rWS, WS_SIZE)]:
        A(f"s_mov_b32 s{r+2}, {n}\ns_mov_b32 s{r+3}, 0x20000")
    A(f"""
    v_lshrrev_b32 v3, 3, v1
    v_and_b32 v4, 7, v1
    v_lshlrev_b32 v4, 4, v4
    v_lshl_or_b32 v5, v3, 10, v4
    v_and_b32 v6, 16, v1
    v_lshlrev_b32 v6, 2, v6
    v_xor_b32 v6, v5, v6
    v_lshlrev_b32 v7, 4, v1
    v_lshlrev_b32 v9, 7, v1
    s_lshl_b32 s{sXO}, s{sRB}, 16
    s_lshl_b32 s{sT+1}, s{sG}, 13
    s_add_u32 s{sXO}, s{sXO}, s{sT+1}
    s_lshl_b32 s{sJ7}, s{sJ}, 7
    s_lshr_b32 s{sT+2}, s{sT}, 1
    s_lshl_b32 s{sT+2}, s{sT+2}, 2
    s_add_u32 s{sT+2}, s{sT+2}, s{sW}
    s_lshl_b32 s{sT+2}, s{sT+2}, 8
    s_lshl_b32 s{sT+3}, s{sQ}, 1
    s_add_u32 s{sT+3}, s{sT+3}, s{sW}
    s_sub_u32 s{sT+3}, s{sT+3}, 2
    s_lshl_b32 s{sT+4}, s{sT+3}, 13
    s_lshl_b32 s{sT+3}, s{sT+3}, 16
    s_add_u32 s{sT+3}, s{sT+3}, s{sJ7}
    s_cmp_lt_u32 s{sW8}, 4
    s_waitcnt lgkmcnt(0)
    s_barrier
    """)
    if OPT["stamps"]:
        A(f"v_mov_b32 v{vST}, 0\nv_writelane_b32 v{vST}, s94, 32\nv_writelane_b32 v{vST}, s96, 0")
        A.prio = None
        stamp(1)
    A("s_cbranch_scc1 L_att")

def helper():
    A.reset()
    A(f"""
    s_setprio 3
    s_mov_b64 exec, 3
    buffer_load_dword v27, v9, {s(rWKV,4)}, s{sT+2} offen
    s_mov_b64 exec, -1
    s_cmp_lt_u32 s{sW}, 2
    s_cbranch_scc1 L_hx
    """)
    dma_rows(rWQ, 6, sT + 3, sT + 4, WQ, 8, "dma")
    A.label("L_hx")
    A.reset()
    x_loads()
    A.vmem(f"buffer_load_dword v10, v13, {s(rWS,4)}, 0 offen sc1", "epoch")
    stamp(18)
    common_setup()
    A(f"""
    v_and_b32 v2, 15, v1
    v_lshrrev_b32 v3, 4, v1
    v_lshlrev_b32 v16, 3, v2
    v_lshl_or_b32 v16, v3, 8, v16
    v_add_u32 v16, {WKV}, v16
    s_lshr_b32 s{sT}, s{sJ}, 1
    s_mul_i32 s{sT+1}, s{sT}, {16*XNS}
    v_mul_u32_u24 v17, {XNS}, v2
    v_lshl_add_u32 v17, v3, 4, v17
    v_add_u32 v17, s{sT+1}, v17
    s_lshl_b32 s{sT+4}, s{sQ}, 3
    s_add_u32 s{sT+4}, s{sT+4}, s{sX}
    s_lshl_b32 s{sT+2}, s{sT+4}, 1
    s_lshr_b32 s{sT+3}, s{sJ}, 2
    s_add_u32 s{sT+2}, s{sT+2}, s{sT+3}
    s_lshl_b32 s{sT+2}, s{sT+2}, 12
    s_add_u32 s{sT+2}, s{sT+2}, {WS_KV}
    s_and_b32 s{sT+3}, s{sT}, 1
    s_lshl_b32 s{sT+4}, s{sT+4}, 3
    s_add_u32 s{sT+4}, s{sT+4}, s{sJ}
    s_lshl_b32 s{sT+4}, s{sT+4}, 6
    s_add_u32 s{sT+4}, s{sT+4}, {WS_FKV}
    v_lshlrev_b32 v18, 4, v2
    v_and_b32 v20, 1, v3
    v_lshrrev_b32 v21, 1, v3
    v_lshl_or_b32 v19, v21, 8, v18
    v_lshl_or_b32 v19, v20, 3, v19
    v_lshl_or_b32 v18, v20, 9, v18
    v_lshl_or_b32 v18, v21, 3, v18
    s_lshl_b32 s{sT+10}, s{sT+3}, 8
    s_add_u32 s{sT+10}, s{sT+10}, s{sT+2}
    s_lshl_b32 s{sT+11}, s{sT+3}, 9
    s_add_u32 s{sT+11}, s{sT+11}, s{sT+2}
    v_mov_b32 v24, 0x3f803f80
    v_mov_b32 v25, 0x3f803f80
    v_lshlrev_b32 v26, 3, v1
    s_add_u32 s{sT+12}, s{sQ}, s{sW}
    s_and_b32 s{sT+12}, s{sT+12}, 3
    s_lshl_b32 s{sT+13}, s{sT+12}, 14
    s_lshl_b32 s{sT+12}, s{sT+12}, 17
    s_add_u32 s{sT+12}, s{sT+12}, s{sJ7}
    """)
    layernorm()
    A(f"""
    s_cmp_eq_u32 s{sW}, 0
    s_cbranch_scc1 L_kv
    s_cmp_lg_u32 s{sW}, 1
    s_cbranch_scc1 L_nosig
    s_waitcnt lgkmcnt(0)
    """)
    lds_signal(0)
    A.label("L_nosig")
    A.reset()
    A("s_setprio 0")
    dma_rows(rWQ, 6, sT + 12, sT + 13, WQ, 16, "dma")
    A("s_waitcnt lgkmcnt(0)")
    nt = 0
    if OPT["touch1"] or OPT["touch2"] == 1:
        A(f"s_cmp_lg_u32 s{sW}, 3\ns_cbranch_scc1 L_not1")
        if OPT["touch1"]: touch(rW1, 9, 27, 7168, 56); nt += 1
        if OPT["touch2"] == 1:
            touch(rW2, 9, 27, 7168, 56); touch(rWO, 9, 27, 2048, 16); nt += 2
        A(f"s_waitcnt vmcnt({nt})\ns_branch L_bar1")
        A.label("L_not1")
    A("s_waitcnt vmcnt(0)\ns_branch L_bar1")
    A.label("L_kv")
    A.prio = 3
    A.c("---------------- K or V for 16 rows ----------------")
    KW = 128; KX = 192; KD = 28
    A(f"""
    s_waitcnt vmcnt(0)
    v_add_u32 v20, 0x9E3779B9, v10
    s_and_b32 s{sT+14}, s{sJ}, 3
    s_cmp_lg_u32 s{sT+14}, 1
    s_cbranch_scc1 L_noones
    s_mov_b64 exec, 3
    buffer_store_dwordx2 v[24:25], v26, {s(rWS,4)}, s{sT+2} offen offset:2048 sc1
    s_mov_b64 exec, -1
    """)
    A.label("L_noones")
    A(f"ds_write_b32 v{vCNT}, v20 offset:12")
    lds_spin(0, 5, 21, "ln")
    stamp(3)
    A(f"s_bitcmp1_b32 s{sJ}, 0\ns_cbranch_scc1 L_isv")
    def kv_gemm(isv):
        A.reset()
        def rd(ks):
            A.lds(f"ds_read_b128 {v(KX+4*ks,4)}, v17 offset:{64*ks}", f"k{ks}")
            A.lds(f"ds_read_b64_tr_b16 {v(KW+4*ks,2)}, v16 offset:{1024*ks}", f"k{ks}")
            A.lds(f"ds_read_b64_tr_b16 {v(KW+4*ks+2,2)}, v16 offset:{1024*ks+128}", f"k{ks}")
        for ks in range(8): rd(ks)
        for g in range(4):
            A.wait(lg=[f"k{4*g+3}"])
            for ks in range(4 * g, 4 * g + 4):
                a, b = (KX, KW) if isv else (KW, KX)
                A(f"v_mfma_f32_16x16x32_bf16 {v(KD,4)}, {v(a+4*ks,4)}, {v(b+4*ks,4)}, {v(KD,4) if ks else 0}")
            if g < 2:
                for ks in range(8 + 4 * g, 12 + 4 * g): rd(ks)
        A(f"""
        s_nop 7
        v_cvt_pk_bf16_f32 v{KD+4}, v{KD}, v{KD+1}
        v_cvt_pk_bf16_f32 v{KD+5}, v{KD+2}, v{KD+3}
        """)
        if isv: A(f"buffer_store_dwordx2 {v(KD+4,2)}, v19, {s(rWS,4)}, s{sT+11} offen offset:1024 sc1")
        else:   A(f"buffer_store_dwordx2 {v(KD+4,2)}, v18, {s(rWS,4)}, s{sT+10} offen sc1")
    kv_gemm(False)
    A("s_branch L_kvd")
    A.label("L_isv")
    kv_gemm(True)
    A.label("L_kvd")
    stamp(4)
    A("s_setprio 0")
    if OPT["kvfirst"]:
        A("s_waitcnt vmcnt(0)")
        flag_store(f"s{sT+4}", 20, 13)
        stamp(21)
    A.label("L_bar1")
    A("s_barrier")
    if not OPT["kvfirst"]:
        A(f"s_cmp_lg_u32 s{sW}, 0\ns_cbranch_scc1 L_nokvf\ns_waitcnt vmcnt(0)")
        flag_store(f"s{sT+4}", 20, 13)
        A.label("L_nokvf")
    stamp(5)
    A.reset()
    A.c("---------------- set-up for the FFN ----------------")
    ACC = 192; POOL = 16
    NR = 11; DA = POOL; DB = POOL + 88
    UF = 104
    HP = 136
    BIA = 168
    uA0, uA1, uD0, uD1, uB = 180, 181, 182, 183, 184
    vB2, vFH, vTG, vZ = 188, 189, 190, 191
    vA0, vA1, vD0, vD1, vH0, vH1, vWO = 2, 3, 6, 5, 4, 8, 14
    A(f"ds_read_b32 v{vTG}, v{vCNT} offset:12")
    tr_common(23, 10)
    A(f"""
    s_lshl_b32 s{sU}, s{sW}, 3
    s_add_u32 s{sU}, s{sU}, s{sJ}
    s_mul_i32 s{sRING}, s{sW}, {RINGB}
    s_add_u32 s{sRING}, s{sRING}, {RING}
    v_and_b32 v10, 32, v1
    v_and_b32 v24, 31, v1
    v_lshlrev_b32 v26, 1, v24
    v_lshl_or_b32 v26, v10, 10, v26
    s_lshl_b32 s{sT}, s{sU}, 7
    s_lshr_b32 s{sT+6}, s{sW}, 1
    s_and_b32 s{sT+7}, s{sW}, 1
    s_lshl_b32 s{sT+8}, s{sT+6}, 6
    s_add_u32 s{sT+1}, s{sJ7}, s{sT+8}
    """)
    A.vmem(f"buffer_load_ushort v{BIA}, v26, {s(rB1,4)}, s{sT} offen", "bias")
    A.vmem(f"buffer_load_ushort v{BIA+4}, v26, {s(rB1,4)}, s{sT} offen offset:64", "bias")
    A.vmem(f"buffer_load_ushort v{vB2}, v26, {s(rB2,4)}, s{sT+1} offen", "bias")
    A(f"""
    s_lshl_b32 s{sT+12}, s{sW}, 12
    s_add_u32 s{sT+12}, s{sT+12}, {WS_FKV}
    v_lshl_add_u32 v22, v1, 6, s{sT+12}
    s_lshl_b32 s{sT+13}, s{sX}, 9
    s_add_u32 s{sT+13}, s{sT+13}, s{sT+12}
    v_and_b32 v21, 7, v1
    v_lshl_add_u32 v21, v21, 6, s{sT+13}
    s_waitcnt lgkmcnt(0)
    v_readfirstlane_b32 s{sTAG}, v{vTG}
    v_lshl_or_b32 v{uA0}, v10, 5, v23
    v_add_u32 v{uA0}, s{sRING}, v{uA0}
    v_xor_b32 v{uA1}, 64, v{uA0}
    v_mul_u32_u24 v24, {XNS}, v24
    v_lshrrev_b32 v25, 1, v10
    """)
    for sg in range(4):
        A(f"""
        s_add_u32 s{sT+9}, s{sQ}, {sg}
        s_and_b32 s{sT+9}, s{sT+9}, 3
        s_lshl_b32 s{sT+10}, s{sT+9}, 8
        v_add3_u32 v{uB+sg}, v24, v25, s{sT+10}
        s_mul_i32 s{sSEG+sg}, s{sT+9}, {128*3584}
        s_add_u32 s{sSEG+sg}, s{sSEG+sg}, s{sT}
        """)
    A(f"""
    v_lshrrev_b32 v25, 3, v1
    v_mul_u32_u24 v{uD0}, 3584, v25
    v_and_b32 v26, 0x70, v6
    v_add_u32 v{uD0}, v{uD0}, v26
    v_add_u32 v{uD1}, {8*3584-1024}, v{uD0}
    """)
    for r in (1, 2, 3, 5, 6, 7, 9, 10, 11): A(f"v_mov_b32 v{BIA+r}, 0")
    A(f"""
    v_mov_b32 v{BIA+8}, 0x3f80
    v_mov_b32 v{vZ}, 0
    s_mul_i32 s{sT+2}, s{sRB}, {HRB}
    s_add_u32 s{sT+2}, s{sT+2}, {WS_HIM}
    s_lshl_b32 s{sT+3}, s{sRB}, 11
    s_add_u32 s{sT+3}, s{sT+3}, {WS_FH}
    v_lshl_or_b32 v{vA0}, v10, 4, v23
    v_xor_b32 v{vA0}, s{sT+8}, v{vA0}
    v_add_u32 v{vA0}, s{sRING}, v{vA0}
    v_xor_b32 v{vA1}, 64, v{vA0}
    v_add_u32 v{vD1}, {8*1024-1024}, v6
    s_lshl_b32 s{sT+9}, s{sT+7}, 10
    v_add_u32 v{vH0}, s{sT+9}, v7
    v_xor_b32 v{vH1}, 0x400, v{vH0}
    s_lshl_b32 s{sT+9}, s{sQ}, 1
    s_add_u32 s{sT+9}, s{sT+9}, s{sJ}
    s_sub_u32 s{sT+10}, s{sT+9}, 7
    s_cmp_ge_u32 s{sT+9}, 7
    s_cselect_b32 s{sT+9}, s{sT+10}, s{sT+9}
    s_mul_i32 s{sBW}, s{sW}, {448*1024}
    s_add_u32 s{sBW}, s{sBW}, s{sJ7}
    s_add_u32 s{sLW}, s{sBW}, {448*1024}
    s_lshl_b32 s{sCW}, s{sT+9}, 16
    s_add_u32 s{sCW}, s{sCW}, s{sBW}
    s_mul_i32 s{sBH}, s{sW}, {28*2048}
    s_add_u32 s{sBH}, s{sBH}, s{sT+2}
    s_add_u32 s{sLH}, s{sBH}, {28*2048}
    s_lshl_b32 s{sCH}, s{sT+9}, 13
    s_add_u32 s{sCH}, s{sCH}, s{sBH}
    s_lshl_b32 s{sT+11}, s{sU}, 6
    s_add_u32 s{sT+11}, s{sT+11}, s{sT+3}
    s_mul_i32 s{sT+12}, s{sW}, 7
    v_min_u32 v{vFH}, 6, v1
    v_add_u32 v{vFH}, s{sT+12}, v{vFH}
    v_lshl_add_u32 v{vFH}, v{vFH}, 6, s{sT+3}
    v_lshlrev_b32 v{vWO}, 10, v25
    v_and_b32 v25, 6, v25
    v_and_b32 v26, 7, v1
    v_xor_b32 v25, v25, v26
    v_lshl_or_b32 v{vWO}, v25, 4, v{vWO}
    v_add_u32 v{vWO}, s{sJ7}, v{vWO}
    s_lshl_b32 s{sWOS}, s{sW}, 1
    s_add_u32 s{sWOS}, s{sWOS}, s{sJ}
    s_and_b32 s{sWOS}, s{sWOS}, 7
    s_lshl_b32 s{sWOS}, s{sWOS}, 16
    s_lshl_b32 s{sWOD}, s{sW}, 14
    s_lshl_b32 s{sT+4}, s{sU}, 13
    s_add_u32 s{sT+4}, s{sT+4}, s{sT+2}
    s_add_u32 s{sT+5}, s{sT+4}, 4096
    """)
    stamp(22)
    poll(21, 10, "kv0")
    stamp(6)
    A("s_barrier")
    A("s_setprio 2\ns_barrier")
    st = dict(seq=[], ni=0, nc=0)
    def slab_dma(n):
        kind, ks = st["seq"][n]
        if n >= NS:
            k2, s2_ = st["seq"][n - NS]
            A.wait(lg=[f"r{k2}{s2_}"])
        A(f"s_add_u32 m0, s{sRING}, {2048*(n%NS)}")
        if kind == "u":
            if ks % 8 == 0: A(f"s_mov_b32 s{sCB}, s{sSEG+ks//8}")
            else: A(f"s_add_u32 s{sCB}, s{sCB}, {16*3584}")
            srd, d0, d1, so = rW1, uD0, uD1, sCB
        else:
            if ks == 0: A("s_nop 0")
            else:
                A(f"s_add_u32 s{sCW}, s{sCW}, {16*1024}")
                if ks % 4 == 0: A(f"s_cmp_eq_u32 s{sCW}, s{sLW}\ns_cselect_b32 s{sCW}, s{sBW}, s{sCW}")
            srd, d0, d1, so = rW2, vD0, vD1, sCW
        A.vmem(f"buffer_load_dwordx4 v{d0}, {s(srd,4)}, s{so} offen lds", f"w{kind}{ks}")
        A.vmem(f"buffer_load_dwordx4 v{d1}, {s(srd,4)}, s{so} offen offset:1024 lds", f"w{kind}{ks}")
    def slab_read(n):
        kind, ks = st["seq"][n]
        o = 2048 * (n % NS); t = f"r{kind}{ks}"
        A.wait(vm=[f"w{kind}{ks}"])
        if kind == "u":
            b = UF + 16 * (ks % 2)
            A.lds(f"ds_read_b64_tr_b16 {v(b,2)}, v{uA0} offset:{o}", t)
            A.lds(f"ds_read_b64_tr_b16 {v(b+2,2)}, v{uA0} offset:{o+512}", t)
            A.lds(f"ds_read_b128 {v(b+8,4)}, v{uB+ks//8} offset:{32*(ks%8)}", t)
            A.lds(f"ds_read_b128 {v(b+12,4)}, v{uB+ks//8} offset:{32*XNS+32*(ks%8)}", t)
            A.lds(f"ds_read_b64_tr_b16 {v(b+4,2)}, v{uA1} offset:{o}", t)
            A.lds(f"ds_read_b64_tr_b16 {v(b+6,2)}, v{uA1} offset:{o+512}", t)
        else:
            b = DA + 8 * (ks % NR)
            A.lds(f"ds_read_b64_tr_b16 {v(b,2)}, v{vA0} offset:{o}", t)
            A.lds(f"ds_read_b64_tr_b16 {v(b+2,2)}, v{vA0} offset:{o+1024}", t)
            A.lds(f"ds_read_b64_tr_b16 {v(b+4,2)}, v{vA1} offset:{o}", t)
            A.lds(f"ds_read_b64_tr_b16 {v(b+6,2)}, v{vA1} offset:{o+1024}", t)
    def fill(nfly):
        while st["ni"] < len(st["seq"]) and st["ni"] < st["nc"] + nfly:
            slab_dma(st["ni"]); st["ni"] += 1
    def consume():
        slab_read(st["nc"]); st["nc"] += 1
    PRE = OPT["pre"]; NF = OPT["nfly"]
    A(f"s_cmp_ge_u32 s{sU}, 28\ns_cbranch_scc1 L_upskip")
    A.c("---------------- FFN up: unit u = 8*hw + j (64 hidden columns x 64 rows) ----------------")
    seq = []; nd = 0
    for ks in range(32):
        if ks >= 8 and ks % 2 == 0 and nd < PRE:
            seq.append(("d", nd)); nd += 1
        seq.append(("u", ks))
    assert nd == PRE
    st.update(seq=seq, ni=0, nc=0)
    fill(2)
    poll(22, 10, "kv1")
    stamp(23)
    A("s_setprio 0\ns_barrier")
    fill(NF)
    for q in range(4):
        A(f"v_mfma_f32_32x32x16_bf16 {v(ACC+16*q,16)}, {v(BIA+4*(q//2),4)}, {v(BIA+8,4)}, 0")
    consume()
    for ks in range(32):
        b = UF + 16 * (ks % 2)
        mf = [f"v_mfma_f32_32x32x16_bf16 {v(ACC+16*q,16)}, {v(b+4*(q//2),4)}, {v(b+8+4*(q%2),4)}, {v(ACC+16*q,16)}" for q in range(4)]
        fill(NF)
        if OPT["touch2"] == 2 and ks == 2:
            A(f"s_cmp_lg_u32 s{sW}, 0\ns_cbranch_scc1 L_not2")
            touch(rW2, 9, 13, 7168, 56); touch(rWO, 9, 13, 2048, 16)
            A.vm = A.vm[:-2]
            A.label("L_not2")
        A.wait(lg=[f"ru{ks}"])
        A(mf[0]); A(mf[1])
        if ks + 1 < 32:
            while st["seq"][st["nc"]] != ("u", ks + 1): consume()
            consume()
        A(mf[2]); A(mf[3])
    stamp(7)
    A("s_nop 11\ns_setprio 2")
    A.vm = []
    for q in range(4):
        ct, rt = q // 2, q % 2
        for half in range(2):
            a = ACC + 16 * q + 8 * half
            d = HP + 8 * q + 4 * half
            for r in range(8): A(f"v_mul_f32 v{a+r}, v{a+r}, |v{a+r}|")
            for p in range(4): A(f"v_cvt_pk_bf16_f32 v{d+p}, v{a+2*p}, v{a+2*p+1}")
            for p in range(4): A(f"v_pk_max_i16 v{d+p}, v{d+p}, 0")
            cap_vm(OPT["stq"])
            A.vmem(f"buffer_store_dwordx4 {v(d,4)}, v7, {s(rWS,4)}, s{sT+4+ct} offen offset:{2048*half+1024*rt} sc1")
    A("s_branch L_upjoin")
    A.label("L_upskip")
    A.reset(); A.prio = 2
    poll(22, 10, "kv2")
    A("s_barrier")
    st.update(seq=[("d", k) for k in range(PRE)], ni=0, nc=0)
    while st["nc"] < PRE:
        fill(2); consume()
    A.label("L_upjoin")
    A.c("---------------- FFN down: K range 448*hw.., output tile 64 x 64 ----------------")
    D1 = OPT["d1"]
    A(f"""
    v_mov_b32 v{BIA}, v{vB2}
    v_mov_b32 v13, v{vFH}
    s_waitcnt lgkmcnt(0)
    """)
    A.reset()
    lds_signal(4)
    A(f"v_mfma_f32_32x32x16_bf16 {v(ACC,16)}, {v(BIA,4)}, {v(BIA+8,4)}, 0")
    A("s_waitcnt vmcnt(0)")
    flag_store(f"s{sT+11}", vTG, vZ)
    stamp(8)
    st.update(seq=[("d", k) for k in range(PRE, 28)], ni=0, nc=0)
    while PRE + st["nc"] < NR:
        fill(NF); consume()
    fill(NF)
    lds_spin(4, 4, 10, "xn")
    nh = [0]; nwo = [0]
    def adv_wo():
        i = nwo[0]
        if i >= 16: return
        cap_vm(OPT["cap"])
        A(f"s_add_u32 m0, s{sWOD}, {WO + 1024*i}")
        if i:
            A(f"s_add_u32 s{sWOS}, s{sWOS}, 8192")
            if i == 8: A(f"s_and_b32 s{sWOS}, s{sWOS}, 0x7ffff")
        else: A("s_nop 0")
        A.vmem(f"buffer_load_dwordx4 v{vWO}, {s(rWO,4)}, s{sWOS} offen lds", "wo")
        nwo[0] += 1
    for _ in range(4): adv_wo()
    poll(13, 10, "h", sleep=2)
    stamp(9)
    A("s_setprio 0")
    def adv_h():
        ks = nh[0]
        if ks >= 28: return
        cap_vm(OPT["cap"])
        b = DB + 8 * (ks % NR)
        if ks:
            A(f"s_add_u32 s{sCH}, s{sCH}, 2048")
            if ks % 4 == 0: A(f"s_cmp_eq_u32 s{sCH}, s{sLH}\ns_cselect_b32 s{sCH}, s{sBH}, s{sCH}")
        A.vmem(f"buffer_load_dwordx4 {v(b,4)}, v{vH0}, {s(rWS,4)}, s{sCH} offen sc1", f"h{ks}")
        A.vmem(f"buffer_load_dwordx4 {v(b+4,4)}, v{vH1}, {s(rWS,4)}, s{sCH} offen sc1", f"h{ks}")
        nh[0] += 1
    def dn_mfma(ks):
        a = DA + 8 * (ks % NR); b = DB + 8 * (ks % NR)
        return [f"v_mfma_f32_32x32x16_bf16 {v(ACC+16*q,16)}, {v(a+4*(q//2),4)}, {v(b+4*(q%2),4)}, {v(ACC+16*q,16) if (ks or q == 0) else 0}" for q in range(4)]
    def adv_read():
        if st["nc"] < len(st["seq"]):
            consume()
            if st["ni"] < len(st["seq"]): cap_vm(OPT["cap"])
            fill(NF)
    for _ in range(OPT["hla"]): adv_h()
    for ks in range(D1):
        mf = dn_mfma(ks)
        A.wait(vm=[f"h{ks}"], lg=[f"rd{ks}"])
        A(mf[0]); A(mf[1])
        if nh[0] < ks + NR: adv_h()
        adv_wo()
        A(mf[2]); A(mf[3])
        if nh[0] < ks + 1 + NR: adv_h()
        if PRE + st["nc"] < ks + 1 + NR: adv_read()
    while nh[0] < 28: adv_h()
    while st["nc"] < len(st["seq"]): adv_read()
    while nwo[0] < 16: adv_wo()
    A.wait(vm="all", lg="all")
    stamp(10)
    A("s_barrier")
    A("s_barrier")
    stamp(11)
    for ks in range(D1, 28):
        for x in dn_mfma(ks): A(x)
    A.c("---------------- reduce the K-split partials, silu, hand the gate tile over ----------------")
    for sl in range(1, 4):
        A(f"""
        s_xor_b32 s{sT}, s{sW}, {sl}
        s_mul_i32 s{sT}, s{sT}, 12288
        s_add_u32 s{sT}, s{sT}, {GRED + 4096*(sl-1)}
        v_add_u32 v{1+sl}, s{sT}, v7
        """)
    A(f"""
    s_mul_i32 s{sT}, s{sW}, 12288
    s_add_u32 s{sT}, s{sT}, {GRED}
    v_add_u32 v5, s{sT}, v7
    """)
    for sl in range(1, 4):
        for q in range(4):
            A.lds(f"ds_write_b128 v{1+sl}, {v(ACC+16*sl+4*q,4)} offset:{1024*q}")
    A(f"""
    s_mul_i32 s{sT+1}, s{sT+7}, {32*GIS}
    s_lshl_b32 s{sT+4}, s{sT+6}, 7
    s_add_u32 s{sT+1}, s{sT+1}, s{sT+4}
    s_add_u32 s{sT+1}, s{sT+1}, {GIM}
    v_and_b32 v8, 31, v1
    v_mul_u32_u24 v8, {GIS}, v8
    v_and_b32 v9, 32, v1
    v_lshrrev_b32 v9, 1, v9
    v_add3_u32 v8, v8, v9, s{sT+1}
    s_mov_b32 s{sT+5}, {hex(f2u(-math.log2(math.e)))}
    """)
    A.wait(lg="all")
    lds_signal(8)
    lds_spin(8, 4, 10, "g")
    stamp(12)
    for q in range(4):
        for sl in range(1, 4):
            A.lds(f"ds_read_b128 {v(POOL+16*(sl-1)+4*q,4)}, v5 offset:{4096*(sl-1)+1024*q}", f"g{q}")
    T = POOL + 48
    for q in range(4):
        A.wait(lg=[f"g{q}"])
        for sl in range(1, 4):
            for r in range(4 * q, 4 * q + 4):
                A(f"v_add_f32 v{ACC+r}, v{ACC+r}, v{POOL+16*(sl-1)+r}")
        for r in range(4 * q, 4 * q + 4): A(f"v_mul_f32 v{T+r}, s{sT+5}, v{ACC+r}")
        for r in range(4 * q, 4 * q + 4): A(f"v_exp_f32 v{T+r}, v{T+r}")
        for r in range(4 * q, 4 * q + 4): A(f"v_add_f32 v{T+r}, 1.0, v{T+r}")
        for r in range(4 * q, 4 * q + 4): A(f"v_rcp_f32 v{T+r}, v{T+r}")
        for r in range(4 * q, 4 * q + 4): A(f"v_mul_f32 v{T+r}, v{ACC+r}, v{T+r}")
        A.lds(f"ds_write_b128 v8, {v(T+4*q,4)} offset:{32*q}")
    A.wait(lg="all")
    stamp(13)
    stamp(31); stamp_flush()
    A("s_barrier\ns_endpgm")

def attention():
    A.reset(); A.prio = 0
    A.label("L_att")
    OA = 128
    QF = 96
    SB = 64
    KV0 = 28
    vIDX, vKO, vV0, vV1 = 6, 9, 24, 25
    vRW = 16
    vQW = 10; vQR = (0, 13, 14, 26)
    A(f"""
    s_lshl_b32 s{sT+2}, s{sW}, 12
    s_add_u32 m0, s{sT+2}, {WKV}
    s_nop 0
    """)
    for i in range(4):
        A.vmem(f"buffer_load_dwordx4 v7, {s(rWKV,4)}, s{sT+2} offen offset:{1024*i} lds", "dma")
    stamp(18)
    common_setup()
    tr_common(2, 3)
    A(f"""
    s_lshr_b32 s{sT}, s{sW}, 1
    s_and_b32 s{sT+1}, s{sW}, 1
    s_lshl_b32 s{sT+2}, s{sT}, 6
    v_and_b32 v3, 32, v1
    v_lshl_or_b32 v2, v3, 5, v2
    v_xor_b32 v2, s{sT+2}, v2
    v_add_u32 v2, {WQ}, v2
    s_mul_i32 s{sT+3}, s{sT+1}, {32*XNS}
    s_lshl_b32 s{sT+10}, s{sW}, 16
    s_add_u32 s{sT+10}, s{sT+10}, {WS_KV}
    s_add_u32 s{sT+11}, s{sT+10}, 1024
    s_add_u32 s{sT+12}, s{sT+10}, 2048
    v_add_u32 v{vKO}, s{sT+10}, v7
    v_and_b32 v4, 31, v1
    v_lshlrev_b32 v{vV0}, 4, v4
    v_lshl_or_b32 v{vV0}, v3, 3, v{vV0}
    v_add_u32 v{vV0}, s{sT+11}, v{vV0}
    v_add_u32 v{vV1}, 512, v{vV0}
    s_mov_b32 exec_lo, 0xffff0000
    s_mov_b32 exec_hi, 0xffff0000
    v_mov_b32 v{vV0}, {OOB}
    v_mov_b32 v{vV1}, {OOB}
    s_mov_b32 exec_lo, 0x00110000
    s_mov_b32 exec_hi, 0x00110000
    v_mov_b32 v{vV0}, s{sT+12}
    v_mov_b32 v{vV1}, s{sT+12}
    s_mov_b64 exec, -1
    v_mul_u32_u24 v4, {XNS}, v4
    v_lshrrev_b32 v3, 1, v3
    v_add3_u32 v4, v4, v3, s{sT+3}
    s_lshl_b32 s{sT+4}, s{sT}, 2
    s_add_u32 s{sT+4}, s{sT+4}, s{sT+1}
    s_lshl_b32 s{sT+4}, s{sT+4}, 10
    s_add_u32 s{sT+4}, s{sT+4}, {QX}
    v_add_u32 v{vQW}, s{sT+4}, v7
    v_mov_b32 v{vIDX}, 0xdddddddd
    """)
    for p in range(4):
        A(f"""
        s_add_u32 s{sT}, s{sW}, {1+p}
        s_and_b32 s{sT}, s{sT}, 3
        s_lshl_b32 s{sT+1}, s{sT}, 11
        s_add_u32 s{sT+1}, s{sT+1}, {QX}
        v_add_u32 v{vQR[p]}, s{sT+1}, v7
        """)
        if p < 3:
            A(f"""
            s_mul_i32 s{sT+2}, s{sT}, {3*4608}
            s_add_u32 s{sT+2}, s{sT+2}, {ORED + 4608*p}
            v_add_u32 v{vRW+p}, s{sT+2}, v7
            v_lshl_add_u32 v{vRW+3+p}, v1, 2, s{sT+2}
            """)
    A(f"""
    s_mul_i32 s{sT+2}, s{sW}, {3*4608}
    s_add_u32 s{sT+2}, s{sT+2}, {ORED}
    v_add_u32 v{vRW+6}, s{sT+2}, v7
    v_lshl_add_u32 v{vRW+7}, v1, 2, s{sT+2}
    s_lshl_b32 s{sCUR}, s{sX}, 13
    s_mov_b32 s{sT+5}, {hex(f2u(0.25*math.log2(math.e)))}
    """)
    for r in range(OA, OA + 128, 2): A(f"v_mov_b64 {v(r,2)}, 0")
    stamp(19)
    x_loads()
    A.wait(vm=["dma"])
    lds_signal(0)
    layernorm()
    A.wait(vm="all", lg="all")
    stamp(3)
    A("s_barrier")
    A.c("---------------- Q projection ----------------")
    stamp(4)
    QA = 28; QACC = 80; ND = 3
    def q_read(kp):
        for h in range(2):
            ks = 2 * kp + h
            b = QA + 16 * (kp % ND) + 8 * h
            A.lds(f"ds_read_b64_tr_b16 {v(b,2)}, v2 offset:{2048*ks}", f"q{kp}")
            A.lds(f"ds_read_b64_tr_b16 {v(b+2,2)}, v2 offset:{2048*ks+512}", f"q{kp}")
            A.lds(f"ds_read_b128 {v(b+4,4)}, v4 offset:{32*ks}", f"q{kp}")
    A("s_setprio 1")
    for kp in range(ND - 1): q_read(kp)
    for kp in range(16):
        A.wait(lg=[f"q{kp}"])
        for h in range(2):
            b = QA + 16 * (kp % ND) + 8 * h
            A(f"v_mfma_f32_32x32x16_bf16 {v(QACC,16)}, {v(b,4)}, {v(b+4,4)}, {v(QACC,16) if (kp or h) else 0}")
            if h == 0 and kp + ND - 1 < 16: q_read(kp + ND - 1)
    A(f"ds_read_b32 v5, v{vCNT} offset:12\ns_nop 10")
    for half in range(2):
        for r in range(8): A(f"v_mul_f32 v{QACC+8*half+r}, s{sT+5}, v{QACC+8*half+r}")
        for p in range(4): A(f"v_cvt_pk_bf16_f32 v{SB+4*half+p}, v{QACC+8*half+2*p}, v{QACC+8*half+2*p+1}")
        A.lds(f"ds_write_b128 v{vQW}, {v(SB+4*half,4)} offset:{2048*half}")
    A.wait(lg="all")
    stamp(5)
    A("s_barrier")
    stamp(6)
    def kv_load(buf, wrap=True):
        b = KV0 + 12 * buf
        return [f"buffer_load_dwordx4 {v(b,4)}, v{vKO}, {s(rWS,4)}, s{sCUR} offen sc1",
                f"buffer_load_dwordx4 {v(b+4,4)}, v{vV0}, {s(rWS,4)}, s{sCUR} offen sc1",
                f"buffer_load_dwordx4 {v(b+8,4)}, v{vV1}, {s(rWS,4)}, s{sCUR} offen sc1",
                f"s_add_u32 s{sCUR}, s{sCUR}, {KVS}"] + ([f"s_and_b32 s{sCUR}, s{sCUR}, 0xffff"] if wrap else [])
    for x in kv_load(0) + kv_load(1): A(x)
    for p in range(4):
        A(f"ds_read_b128 {v(QF+8*p,4)}, v{vQR[p]}")
        A(f"ds_read_b128 {v(QF+8*p+4,4)}, v{vQR[p]} offset:1024")
    A(f"""
    v_readfirstlane_b32 s{sTAG}, v5
    s_mov_b32 s{sLOOP}, 4
    s_waitcnt lgkmcnt(0)
    s_barrier
    s_waitcnt vmcnt(5)
    """)
    stamp(8)
    A(f"""
    v_mfma_f32_32x32x16_bf16 {v(SB,16)}, {v(KV0,4)}, {v(QF,4)}, 0
    s_nop 10
    s_waitcnt vmcnt(3)
    """)
    A.reset()
    def ored_write(slot):
        p, t = slot // 2, slot % 2
        o = OA + 16 * slot
        return [f"ds_write_b128 v{vRW+p}, {v(o,4)} offset:{2304*t}",
                f"ds_write_b128 v{vRW+p}, {v(o+4,4)} offset:{2304*t+1024}",
                f"ds_write_b32 v{vRW+3+p}, v{o+8} offset:{2304*t+2048}"]
    def att_pass(kt, first=False, loads=True, last=False):
        p0, p1, p2 = OPT["lay"]
        if OPT["pstamp"]:
            A(f"s_waitcnt lgkmcnt(0)\ns_mov_b32 m0, s98\nv_writelane_b32 v26, s90, m0\ns_add_u32 s98, s98, 1\ns_memtime s[90:91]")
        for i in range(8):
            cur = SB + 16 * (i % 2); oth = SB + 16 * ((i + 1) % 2)
            tp = (i - 1) % 8; tn = (i + 1) % 8
            vb = KV0 + 12 * ((kt if i >= 1 else kt - 1) % 3) + 4
            kb = KV0 + 12 * ((kt if i < 7 else kt + 1) % 3)
            ins = {}
            if not (first and i == 0):
                ins.setdefault(p0, []).append(f"v_smfmac_f32_32x32x32_bf16 {v(OA+16*tp,16)}, {v(vb,4)}, {v(oth,8)}, v{vIDX}")
                ins.setdefault(p1, []).append(f"v_smfmac_f32_32x32x32_bf16 {v(OA+16*tp,16)}, {v(vb+4,4)}, {v(oth+8,8)}, v{vIDX}")
            if not (last and i == 7):
                if i == 7: ins.setdefault(p2, []).append(f"s_waitcnt vmcnt({3 if loads else 0})")
                ins.setdefault(p2, []).append(f"v_mfma_f32_32x32x16_bf16 {v(oth,16)}, {v(kb,4)}, {v(QF+4*tn,4)}, 0")
            if loads and i == (OPT["bar4"] if first else 0):
                pl = min(p2 + 3, 15)
                if first: ins.setdefault(pl, []).append("s_barrier")
                ins.setdefault(pl, []).extend(kv_load((kt + 2) % 3))
            if last and 1 <= i <= 6:
                for pos, x in zip(OPT["orw"], ored_write(i - 1)): ins.setdefault(pos, []).append(x)
            for e in range(16):
                for x in ins.get(e, []): A(x)
                A(f"v_exp_f32 v{cur+e}, v{cur+e}")
    if OPT["pstamp"]: A("s_mov_b32 s98, 0\nv_mov_b32 v26, 0\ns_getreg_b32 s90, hwreg(HW_REG_HW_ID)")
    att_pass(0, first=True)
    A.label("L_att_loop")
    att_pass(1); att_pass(2); att_pass(3)
    A(f"""
    s_sub_u32 s{sLOOP}, s{sLOOP}, 1
    s_cmp_lg_u32 s{sLOOP}, 0
    s_cbranch_scc1 L_att_loop
    """)
    att_pass(13)
    att_pass(14, loads=False)
    stamp(9)
    att_pass(15, loads=False, last=True)
    A(f"""
    v_smfmac_f32_32x32x32_bf16 {v(OA+112,16)}, {v(KV0+4,4)}, {v(SB+16,8)}, v{vIDX}
    s_waitcnt lgkmcnt(0)
    v_smfmac_f32_32x32x32_bf16 {v(OA+112,16)}, {v(KV0+8,4)}, {v(SB+24,8)}, v{vIDX}
    """)
    if OPT["pstamp"]:
        A(f"""
        s_mov_b32 m0, s98
        v_writelane_b32 v26, s90, m0
        s_memtime s[90:91]
        s_waitcnt lgkmcnt(0)
        v_writelane_b32 v26, s90, 17
        s_lshl_b32 s92, s2, 3
        s_add_u32 s92, s92, s{sW8}
        s_lshl_b32 s92, s92, 8
        s_add_u32 s92, s92, {WS_STAMP + 0x100000}
        v_lshlrev_b32 v27, 2, v1
        buffer_store_dword v26, v27, s[{rWS}:{rWS+3}], s92 offen
        """)
    stamp(10)
    A("s_barrier")
    A.reset()
    def rbuf(p, t): return OA + 12 * (2 * p + t)
    for t in range(2):
        for p in range(3):
            b = rbuf(p, t)
            A.lds(f"ds_read_b32 v{b+8}, v{vRW+7} offset:{4608*p+2304*t+2048}", f"r{p}{t}")
            A.lds(f"ds_read_b128 {v(b,4)}, v{vRW+6} offset:{4608*p+2304*t}", f"r{p}{t}")
            A.lds(f"ds_read_b128 {v(b+4,4)}, v{vRW+6} offset:{4608*p+2304*t+1024}", f"r{p}{t}")
    A(f"""
    s_lshl_b32 s{sT}, s{sJ}, 2
    s_add_u32 s{sT}, s{sT}, s{sW}
    s_lshl_b32 s{sT+1}, s{sRB}, 5
    s_add_u32 s{sT}, s{sT}, s{sT+1}
    s_lshl_b32 s{sT+2}, s{sT}, 11
    s_add_u32 s{sT+2}, s{sT+2}, {WS_OIM}
    """)
    def o_norm_store(t):
        o = OA + 96 + 16 * t
        d = SB + 16 * t
        A(f"v_rcp_f32 v{d+8}, v{o+8}\ns_nop 0")
        for q in range(4):
            A(f"v_pk_mul_f32 {v(d+2*q,2)}, {v(o+2*q,2)}, {v(d+8,2)} op_sel_hi:[1,0]")
        for q in range(4):
            A(f"v_cvt_pk_bf16_f32 v{d+12+q}, v{d+2*q}, v{d+2*q+1}")
        A(f"buffer_store_dwordx4 {v(d+12,4)}, v7, {s(rWS,4)}, s{sT+2} offen offset:{1024*t} sc1")
    for t in range(2):
        o = OA + 96 + 16 * t
        for p in range(3):
            b = rbuf(p, t)
            A.wait(lg=[f"r{p}{t}"])
            A(f"v_add_f32 v{o+8}, v{o+8}, v{b+8}")
            for q in range(4):
                A(f"v_pk_add_f32 {v(o+2*q,2)}, {v(o+2*q,2)}, {v(b+2*q,2)}")
        o_norm_store(t)
    stamp(11)
    A("s_barrier")
    A(f"""
    s_lshl_b32 s{sT+3}, s{sT}, 6
    s_add_u32 s{sT+3}, s{sT+3}, {WS_FO}
    s_mov_b32 s{sT+4}, {hex(f2u(2.0**-30))}
    s_mov_b32 s{sT+5}, {hex(f2u(2.0**60))}
    v_maximum3_f32 v13, |v{OA+96}|, |v{OA+97}|, |v{OA+98}|
    v_maximum3_f32 v10, |v{OA+112}|, |v{OA+113}|, |v{OA+114}|
    v_maximum3_f32 v13, v13, |v{OA+99}|, |v{OA+100}|
    v_maximum3_f32 v10, v10, |v{OA+115}|, |v{OA+116}|
    v_maximum3_f32 v13, v13, |v{OA+101}|, |v{OA+102}|
    v_maximum3_f32 v10, v10, |v{OA+117}|, |v{OA+118}|
    v_maximum3_f32 v13, v13, |v{OA+103}|, |v{OA+119}|
    v_maximum3_f32 v13, v13, v10, v10
    v_cmp_nle_f32 s[{sT+6}:{sT+7}], s{sT+4}, v{OA+104}
    v_cmp_nle_f32 s[{sT+8}:{sT+9}], s{sT+4}, v{OA+120}
    v_cmp_nge_f32 s[{sT+10}:{sT+11}], s{sT+5}, v{OA+104}
    v_cmp_nge_f32 s[{sT+12}:{sT+13}], s{sT+5}, v{OA+120}
    v_cmp_nge_f32 vcc, 0x7f000000, v13
    s_or_b64 s[{sT+6}:{sT+7}], s[{sT+6}:{sT+7}], s[{sT+8}:{sT+9}]
    s_or_b64 s[{sT+10}:{sT+11}], s[{sT+10}:{sT+11}], s[{sT+12}:{sT+13}]
    s_or_b64 s[{sT+6}:{sT+7}], s[{sT+6}:{sT+7}], vcc
    s_or_b64 s[{sT+6}:{sT+7}], s[{sT+6}:{sT+7}], s[{sT+10}:{sT+11}]
    """)
    A("s_branch L_slow" if OPT["force_slow"] else "s_cbranch_scc1 L_slow")
    A.label("L_safe")
    A.reset()
    EO = 16; EACC = 80; EX = 96; EA = 112; NE = 9
    A(f"""
    v_and_b32 v2, 3, v1
    v_lshlrev_b32 v2, 3, v2
    v_and_b32 v3, 28, v1
    v_lshl_or_b32 v2, v3, 5, v2
    v_and_b32 v3, 32, v1
    v_lshl_or_b32 v2, v3, 6, v2
    v_and_b32 v3, 24, v1
    v_lshl_or_b32 v2, v3, 2, v2
    v_xor_b32 v3, 32, v2
    v_xor_b32 v4, 64, v2
    v_xor_b32 v5, 0x60, v2
    v_and_b32 v9, 15, v1
    v_lshrrev_b32 v13, 4, v1
    s_lshl_b32 s{sT+4}, s{sW}, 4
    v_add_u32 v12, s{sT+4}, v9
    v_lshlrev_b32 v10, 10, v12
    v_mul_u32_u24 v12, {GIS}, v12
    v_lshl_add_u32 v12, v13, 4, v12
    v_add_u32 v12, {GIM}, v12
    v_and_b32 v14, 16, v1
    v_lshl_or_b32 v11, v14, 1, v10
    v_and_b32 v8, 32, v1
    v_lshrrev_b32 v8, 1, v8
    v_or_b32 v11, v11, v8
    v_lshl_or_b32 v10, v13, 3, v10
    s_lshl_b32 s{sT+8}, s{sRB}, 16
    s_add_u32 s{sT+9}, s{sJ7}, s{sT+8}
    s_lshr_b32 s{sT+10}, s{sW}, 1
    s_lshl_b32 s{sT+10}, s{sT+10}, 10
    s_and_b32 s{sT+11}, s{sW}, 1
    s_lshl_b32 s{sT+11}, s{sT+11}, 8
    s_add_u32 s{sT+10}, s{sT+10}, s{sT+11}
    s_add_u32 s{sT+10}, s{sT+10}, s{sT+8}
    s_add_u32 s{sT+10}, s{sT+10}, {WS_OIM}
    v_lshlrev_b32 v6, 4, v9
    v_lshl_or_b32 v6, v14, 5, v6
    v_and_b32 v8, 32, v1
    v_lshl_or_b32 v6, v8, 6, v6
    v_add_u32 v6, s{sT+10}, v6
    s_lshl_b32 s{sCUR}, s{sJ}, 13
    s_lshl_b32 s{sT+12}, s{sRB}, 11
    s_add_u32 s{sT+12}, s{sT+12}, {WS_FO}
    v_and_b32 v8, 31, v1
    v_lshl_add_u32 v8, v8, 6, s{sT+12}
    """)
    flag_prep(9, 13)
    def e_read(ks):
        b = EA + 16 * (ks % NE)
        for t4 in range(4):
            for i in range(2):
                A.lds(f"ds_read_b64_tr_b16 {v(b+4*t4+2*i,2)}, v{2+t4} offset:{WO+4096*ks+1024*i}", f"e{ks}")
    for ks in range(3): e_read(ks)
    A("s_waitcnt vmcnt(0)")
    flag_store(f"s{sT+3}", 9, 13)
    stamp(12)
    A(f"""
    s_or_b32 s{sT+13}, s2, s{sW8}
    s_cmp_lg_u32 s{sT+13}, 0
    s_cbranch_scc1 L_noepoch
    """)
    flag_store("0", 9, 13)
    A.label("L_noepoch")
    for t4 in range(4):
        A(f"buffer_load_dwordx2 {v(EO+2*t4,2)}, v10, {s(rX,4)}, s{sT+9} offen offset:{32*t4}")
    for ks in range(3, NE): e_read(ks)
    A("s_waitcnt vmcnt(0)")
    for p in range(8):
        A(f"v_lshlrev_b32 v{EX+2*p}, 16, v{EO+p}")
        A(f"v_and_b32 v{EX+2*p+1}, 0xffff0000, v{EO+p}")
    poll(8, 9, "o")
    stamp(13)
    for ks in range(16):
        A.vmem(f"buffer_load_dwordx4 {v(EO+4*ks,4)}, v6, {s(rWS,4)}, s{sCUR} offen sc1", f"o{ks}")
        if ks < 15: A(f"s_add_u32 s{sCUR}, s{sCUR}, 4096")
        if ks < 15 and ks % 2: A(f"s_and_b32 s{sCUR}, s{sCUR}, 0xffff")
    for ks in range(16):
        A.wait(vm=[f"o{ks}"], lg=[f"e{ks}"])
        b = EA + 16 * (ks % NE)
        for t4 in range(4):
            A(f"v_mfma_f32_16x16x32_bf16 {v(EACC+4*t4,4)}, {v(b+4*t4,4)}, {v(EO+4*ks,4)}, {v(EACC+4*t4,4) if ks else 0}")
        if ks + NE < 16: e_read(ks + NE)
    stamp(14)
    A("s_barrier")
    for t4 in range(4):
        A.lds(f"ds_read_b128 {v(EO+4*t4,4)}, v12 offset:{64*t4}", f"g{t4}")
    A("s_nop 3")
    for P in range(2):
        for t4 in (2 * P, 2 * P + 1):
            A.wait(lg=[f"g{t4}"])
            for q in range(2):
                r = 4 * t4 + 2 * q
                A(f"v_pk_fma_f32 {v(EX+r,2)}, {v(EACC+r,2)}, {v(EO+r,2)}, {v(EX+r,2)}")
        for p in range(4 * P, 4 * P + 4):
            A(f"v_cvt_pk_bf16_f32 v{EO+16+p}, v{EX+2*p}, v{EX+2*p+1}")
        b = EO + 16 + 4 * P
        A(f"""
        s_nop 0
        v_permlane16_swap_b32 v{b}, v{b+2}
        v_permlane16_swap_b32 v{b+1}, v{b+3}
        buffer_store_dwordx4 {v(b,4)}, v11, {s(rOUT,4)}, s{sT+9} offen offset:{64*P} {OPT["outsc"]}
        """)
    if OPT["stamps"]:
        A("s_waitcnt vmcnt(0)")
        stamp(31); stamp_flush()
    A("s_endpgm")

    A.label("L_slow")
    M0_, M1_ = 13, 10
    CI = OA
    A(f"""
    s_waitcnt vmcnt(0) lgkmcnt(0)
    s_lshl_b32 s{sT+4}, s{sW}, 16
    v_subrev_u32 v{vKO}, s{sT+4}, v{vKO}
    v_subrev_u32 v{vV0}, s{sT+4}, v{vV0}
    v_subrev_u32 v{vV1}, s{sT+4}, v{vV1}
    v_mov_b32 v{M0_}, 0xff800000
    v_mov_b32 v{M1_}, 0xff800000
    s_mov_b32 s{sCUR}, 0
    s_mov_b32 s{sLOOP}, 64
    """)
    A.label("L_slow1")
    A(f"""
    buffer_load_dwordx4 {v(KV0,4)}, v{vKO}, {s(rWS,4)}, s{sCUR} offen sc1
    s_add_u32 s{sCUR}, s{sCUR}, {KVS}
    s_waitcnt vmcnt(0)
    v_mfma_f32_32x32x16_bf16 {v(SB,16)}, {v(KV0,4)}, {v(QF+24,4)}, 0
    v_mfma_f32_32x32x16_bf16 {v(SB+16,16)}, {v(KV0,4)}, {v(QF+28,4)}, 0
    s_nop 15
    """)
    for q in range(8):
        A(f"v_max3_f32 v{M0_}, v{M0_}, v{SB+2*q}, v{SB+2*q+1}")
    for q in range(8):
        A(f"v_max3_f32 v{M1_}, v{M1_}, v{SB+16+2*q}, v{SB+16+2*q+1}")
    A(f"""
    s_sub_u32 s{sLOOP}, s{sLOOP}, 1
    s_cmp_lg_u32 s{sLOOP}, 0
    s_cbranch_scc1 L_slow1
    v_mov_b32 v11, v{M0_}
    v_mov_b32 v12, v{M1_}
    s_nop 1
    v_permlane32_swap_b32 v{M0_}, v11
    v_permlane32_swap_b32 v{M1_}, v12
    s_nop 1
    v_max_f32 v{M0_}, v{M0_}, v11
    v_max_f32 v{M1_}, v{M1_}, v12
    """)
    for r in range(16):
        A(f"v_sub_f32 v{CI+r}, 0, v{M0_}")
        A(f"v_sub_f32 v{CI+16+r}, 0, v{M1_}")
    for r in range(0, 32, 2): A(f"v_mov_b64 {v(OA+96+r,2)}, 0")
    A(f"""
    s_mov_b32 s{sCUR}, 0
    s_mov_b32 s{sLOOP}, 64
    """)
    A.label("L_slow2")
    for x in kv_load(0, wrap=False): A(x)
    A(f"""
    s_waitcnt vmcnt(0)
    v_mfma_f32_32x32x16_bf16 {v(SB,16)}, {v(KV0,4)}, {v(QF+24,4)}, {v(CI,16)}
    v_mfma_f32_32x32x16_bf16 {v(SB+16,16)}, {v(KV0,4)}, {v(QF+28,4)}, {v(CI+16,16)}
    s_nop 15
    """)
    for r in range(32): A(f"v_exp_f32 v{SB+r}, v{SB+r}")
    A("s_nop 1")
    for t in range(2):
        A(f"v_smfmac_f32_32x32x32_bf16 {v(OA+96+16*t,16)}, {v(KV0+4,4)}, {v(SB+16*t,8)}, v{vIDX}")
        A(f"v_smfmac_f32_32x32x32_bf16 {v(OA+96+16*t,16)}, {v(KV0+8,4)}, {v(SB+16*t+8,8)}, v{vIDX}")
    A(f"""
    s_nop 7
    s_sub_u32 s{sLOOP}, s{sLOOP}, 1
    s_cmp_lg_u32 s{sLOOP}, 0
    s_cbranch_scc1 L_slow2
    s_nop 15
    """)
    o_norm_store(0); o_norm_store(1)
    A("s_branch L_safe")

prologue()
helper()
attention()
A.label("L_end")

head = open(f"cdna_kernels/{NAME}.s.ref").read()
pre = head[:head.index("; @launch")]
out = pre + f"""; @launch grid=(256,1,1) block=(512,1,1) lds={LDS_BYTES}
.amdgcn_target "amdgcn-amd-amdhsa--gfx950"
.text
.globl {NAME}_kernel
.p2align 8
.type {NAME}_kernel,@function
{NAME}_kernel:
""" + A.text() + f"""s_endpgm
.section .rodata,"a"
.p2align 6
.amdhsa_kernel {NAME}_kernel
  .amdhsa_next_free_vgpr 256
  .amdhsa_next_free_sgpr {100 if OPT['stamps'] else 96}
  .amdhsa_accum_offset 256
  .amdhsa_group_segment_fixed_size 0
  .amdhsa_kernarg_size 104
  .amdhsa_user_sgpr_count 2
  .amdhsa_user_sgpr_kernarg_segment_ptr 1
  .amdhsa_system_sgpr_workgroup_id_x 1
.end_amdhsa_kernel
"""
open(sys.argv[1], "w").write(out)
```

```python
import sys, math, struct
from asmlib import Asm, v, s

NAME = "recurrent_scan__grouped_kv_mqa__dense_activation_squared_relu__prompt"
OPT = dict(stamps=0, pstamp=0, hstamp=0, force_slow=0, lay=(1, 4, 7), codepf=1, touch0=1, st1=0, st2=0, t1=1, t2=4, t3=16, t4=1, qp=9, qc=14,
           outsc="nt", chk=3, nfly=4, cap=11, hloc=1, oloc="", kvloc=1, ltry=48, force_global=0, xc=10, d1=22, wqcap=8, orw=(12, 13, 14),
           da=(12, 4), db=(8, 4), woa=(12, 20), fa=8, p1=14, fb=3, p2=8, xs=3, kacc=4, eo1=10, gat=13, epre=2,
           psleep=1, osleep=1, hq=2, early=0, pace=9, onepoll=1, epre2=4, old='sc1', hld='sc1', kld='sc1')
for a_ in sys.argv[2:]:
    k_, x_ = a_.split("=")
    assert k_ in OPT, k_
    OPT[k_] = eval(x_)

def f2u(x): return struct.unpack("<I", struct.pack("<f", x))[0]

WS_FKV = 0x1000
WS_FKL = 0x8000
WS_FH = 0x10000
WS_FO = 0x30000
WS_KV = 0x40000; KVS = 4096
KVL = 0x40000
WS_OIM = 0x100000
WS_HIM = 0x400000
WS_STAMP = 0xC00000
WS_SIZE = 0x1000000
HRB = 229376
XNS = 1040
ORED = 0; GRED = 0; ORL = 156672
WO = 50176
WQ = 66560
WKV = 132096; QX = 148480
RING = 115712; NS = 5; SLOT = [2, 3, 0, 1, 4]
GIM = RING; GIS = 272
CNT = 162816
C_LN, C_G, C_XN, C_LOC, C_A, C_W, C_C, C_KV, C_X, C_TAG, C_O = 0, 4, 8, 12, 16, 20, 24, 28, 32, 36, 40
RT = CNT + 64
LDS_BYTES = 163136
sW8, sRB, sJ, sW, sTAG = 3, 4, 5, 6, 7
rX, rWQ, rWKV, rWO, rW1, rB1, rW2, rB2, rOUT, rWS = 8, 12, 16, 20, 24, 28, 32, 36, 40, 44
sPC = 48
sG, sQ, sX, sJ7, sXO, sHST = 50, 51, 52, 53, 54, 55
sK = 56
sT = 60
sCW, sBW, sLW, sCH, sBH, sLH, sCB, sWOS = 72, 73, 74, 75, 76, 77, 78, 79
sSEG = 80
sCNT, sCUR, sWOD, sRING, sH1, sRH = 84, 85, 86, 87, 88, 89
sLOOP, sPS = 89, 88
sFLG, sKST, sKFL = 98, 100, 101
sXCC, sLOC = 48, 49
rW1B, rWSB = rWQ, rWKV
SPIN = 400000
OOB = 0x40000000

A = Asm()
vST = 15
def stamp(idx):
    if not OPT["stamps"]: return
    if OPT["stamps"] != 1 and idx not in OPT["stamps"] and idx != 31: return
    p = A.prio
    A("s_memtime s[90:91]\ns_memrealtime s[92:93]\ns_waitcnt lgkmcnt(0)")
    if p is not None: A("s_setprio 3")
    A(f"v_writelane_b32 v{vST}, s90, {idx}\nv_writelane_b32 v{vST}, s92, {idx+32}")
    if p is not None: A(f"s_setprio {p}")
    A.lg = []
hs = [1]
def hstamp():
    if not OPT["hstamp"]: return
    p = A.prio
    A("s_memtime s[90:91]\ns_waitcnt lgkmcnt(0)\ns_setprio 3")
    A(f"v_writelane_b32 v{vST}, s90, {hs[0]}\ns_setprio {p}")
    hs[0] += 1
    A.lg = []
def stamp_flush():
    if not OPT["stamps"]: return
    A(f"""
    s_lshl_b32 s92, s2, 3
    s_add_u32 s92, s92, s{sW8}
    s_lshl_b32 s92, s92, 8
    s_add_u32 s92, s92, {WS_STAMP}
    v_lshlrev_b32 v14, 2, v1
    buffer_store_dword v{vST}, v14, s[{rWS}:{rWS+3}], s92 offen
    """)

deferred = []
def store2(text, local, tag=None, cmp=True):
    n = len(deferred)
    if cmp: A(f"s_cmp_lg_u32 s{sLOC}, 0")
    A(f"s_cbranch_scc0 L_g{n}")
    A.vmem(f"{text} {local}", tag)
    A.label(f"L_b{n}")
    deferred.append(f"L_g{n}:\n{text} sc1\ns_branch L_b{n}")

def poll(voff, vtmp, name, sleep=0, tag=sTAG, tries=SPIN):
    A(f"s_mov_b32 s{sCNT}, {tries}")
    A.label(f"L_poll_{name}")
    A(f"""
    buffer_load_dword v{vtmp}, v{voff}, s[{rWS}:{rWS+3}], 0 offen sc1
    s_waitcnt vmcnt(0)
    v_cmp_ne_u32 vcc, s{tag}, v{vtmp}
    s_cbranch_vccz L_done_{name}
    """)
    if sleep: A(f"s_sleep {sleep}")
    A(f"""
    s_sub_u32 s{sCNT}, s{sCNT}, 1
    s_cmp_lg_u32 s{sCNT}, 0
    s_cbranch_scc1 L_poll_{name}
    """)
    if tries == SPIN: A.label(f"L_done_{name}")
    A.vm = []

def flag_store(soff, vt0, vt1, local=False):
    A("s_mov_b64 exec, 1")
    x = f"buffer_store_dword v{vt0}, v{vt1}, s[{rWS}:{rWS+3}], {soff} offen"
    if local: store2(x, "")
    else: A.vmem(x + " sc1")
    A("s_mov_b64 exec, -1")

vCNT, vONE = 11, 12
def sig(off):
    return ["s_mov_b64 exec, 1", f"ds_add_u32 v{vCNT}, v{vONE} offset:{off}", "s_mov_b64 exec, -1"]
def lds_signal(off):
    x = sig(off)
    A(x[0]); A.lds(x[1]); A(x[2])

def lds_spin(off, n, vt0, name, sleep=0):
    A(f"s_mov_b32 s{sCNT}, {SPIN * 4}")
    A.label(f"L_spin_{name}")
    A(f"""
    ds_read_b32 v{vt0}, v{vCNT} offset:{off}
    s_waitcnt lgkmcnt(0)
    v_cmp_ne_u32 vcc, {n}, v{vt0}
    s_cbranch_vccz L_spun_{name}
    """)
    if sleep: A(f"s_sleep {sleep}")
    A(f"""
    s_sub_u32 s{sCNT}, s{sCNT}, 1
    s_cmp_lg_u32 s{sCNT}, 0
    s_cbranch_scc1 L_spin_{name}
    """)
    A.label(f"L_spun_{name}")
    A.lg = []
def lds_check(off, n, vt0, name, extra=""):
    A(f"""
    s_waitcnt lgkmcnt(0)
    {extra}
    v_cmp_ne_u32 vcc, {n}, v{vt0}
    s_cbranch_vccz L_spun_{name}
    """)
    lds_spin(off, n, vt0, name)

def tr_common(dst, t0):
    A(f"""
    v_and_b32 v{dst}, 3, v1
    v_lshlrev_b32 v{dst}, 3, v{dst}
    v_and_b32 v{t0}, 16, v1
    v_lshl_or_b32 v{dst}, v{t0}, 1, v{dst}
    v_and_b32 v{t0}, 8, v1
    v_lshl_or_b32 v{dst}, v{t0}, 3, v{dst}
    v_and_b32 v{t0}, 12, v1
    v_lshl_or_b32 v{dst}, v{t0}, 5, v{dst}
    """)

def cap_vm(n):
    if "hst" in A.vm: n += 8
    if len(A.vm) > n:
        A(f"s_waitcnt vmcnt({n})"); A.vm = A.vm[len(A.vm) - n:] if n else []

def dma_rows(srd, voff, ssrc, sdst, ldsbase, n, tag, cap=63):
    for i in range(n):
        cap_vm(cap - 1)
        if i % 4 == 0:
            A(f"s_add_u32 m0, s{sdst}, {ldsbase + 1024*i}")
            if i: A(f"s_add_u32 s{ssrc}, s{ssrc}, {8192 + 3072}")
            else: A("s_nop 0")
        else:
            A(f"s_add_u32 s{ssrc}, s{ssrc}, 7168")
        A.vmem(f"buffer_load_dwordx4 v{voff}, {s(srd,4)}, s{ssrc} offen offset:{1024*(i%4)} lds", tag)

ntouch = [0]
def touch(wave, items):
    ntouch[0] += 1
    A(f"s_cmp_lg_u32 s{sW}, {wave}\ns_cbranch_scc1 L_nt{ntouch[0]}")
    for srd, vt, vd, per_wg, base, mask in items:
        A(f"s_mul_i32 s{sT}, s2, {per_wg}")
        if base: A(f"s_add_u32 s{sT}, s{sT}, {base}")
        A(f"s_mov_b32 exec_lo, {hex(mask)}\ns_mov_b32 exec_hi, 0")
        A(f"buffer_load_dword v{vd}, v{vt}, {s(srd,4)}, s{sT} offen")
    A("s_mov_b64 exec, -1")
    A.label(f"L_nt{ntouch[0]}")

def s_touch(ptr, per_wg, sidx, per_idx, base, n):
    A(f"""
    s_mul_i32 s{sT}, s2, {per_wg}
    s_mul_i32 s{sT+1}, s{sidx}, {per_idx}
    s_add_u32 s{sT}, s{sT}, s{sT+1}
    s_add_u32 s{sT+2}, s{ptr}, s{sT}
    s_addc_u32 s{sT+3}, s{ptr+1}, 0
    """)
    for i in range(n): A(f"s_load_dword s99, s[{sT+2}:{sT+3}], {base + 64*i}")

def v_lanes(v0, v1, t0, data, ones):
    A(f"""
    v_and_b32 v{v0}, 15, v1
    v_lshlrev_b32 v{v0}, 4, v{v0}
    v_and_b32 v{t0}, 32, v1
    v_lshl_or_b32 v{v0}, v{t0}, 3, v{v0}
    """)
    if data: A(f"v_add_u32 v{v0}, {data}, v{v0}")
    A(f"""
    v_add_u32 v{v1}, 512, v{v0}
    s_mov_b32 exec_lo, 0xffff0000
    s_mov_b32 exec_hi, 0xffff0000
    v_mov_b32 v{v0}, {OOB}
    v_mov_b32 v{v1}, {OOB}
    s_mov_b32 exec_lo, 0x00110000
    s_mov_b32 exec_hi, 0x00110000
    v_mov_b32 v{v0}, {ones}
    v_mov_b32 v{v1}, {ones}
    s_mov_b64 exec, -1
    """)

XR = 28; CR = 60; LA = 124
def x_loads():
    for i in range(8):
        A.vmem(f"buffer_load_dwordx4 {v(XR+4*i,4)}, v5, {s(rX,4)}, s{sXO} offen offset:{128*i}", f"x{i}")
def ln_setup(vw):
    A(f"""
    s_mul_i32 s{sT}, s{sG}, {8*XNS}
    v_mul_u32_u24 v{vw}, {XNS}, v3
    v_add3_u32 v{vw}, v{vw}, v4, s{sT}
    v_mov_b32 v{vONE}, 1
    v_mov_b64 {v(LA,2)}, 0
    v_mov_b32 v{LA+2}, {hex(f2u(1e-5))}
    s_lshl_b32 s{sT}, s{sG}, 5
    s_add_u32 s{sT}, s{sT}, {RT}
    v_lshl_add_u32 v{LA+3}, v3, 2, s{sT}
    s_mov_b32 s{sK}, 0x3f803f80
    s_mov_b32 s{sK+1}, 0x00003f80
    s_mov_b32 s{sK+2}, 0x3f800000
    s_mov_b32 s{sK+3}, {hex(f2u(1.0/512))}
    """)
def srds(L):
    for r, n in L: A(f"s_mov_b32 s{r+2}, {n}\ns_mov_b32 s{r+3}, 0x20000")
def red8(r):
    A(f"""
    v_add_f32_dpp v{r}, v{r}, v{r} quad_perm:[1,0,3,2] row_mask:0xf bank_mask:0xf
    s_nop 1
    v_add_f32_dpp v{r}, v{r}, v{r} quad_perm:[2,3,0,1] row_mask:0xf bank_mask:0xf
    s_nop 1
    v_add_f32_dpp v{r}, v{r}, v{r} row_half_mirror row_mask:0xf bank_mask:0xf
    """)
def layernorm(vw, mid=None):
    A.c("---------------- LayerNorm of 8 rows ----------------")
    for i in range(8):
        A.wait(vm=[f"x{i}"])
        if i == 0: stamp(2)
        for d in range(4):
            A(f"v_dot2c_f32_bf16 v{LA}, s{sK}, v{XR+4*i+d}")
    stamp(16)
    if mid: mid()
    else: A("s_nop 2")
    red8(LA)
    A(f"v_mul_f32 v{LA}, {hex(f2u(-1.0/512))}, v{LA}")
    def cen(i):
        for d in range(4):
            c = CR + 8 * (i % 2) + 2 * d
            A(f"v_dot2_f32_bf16 v{c}, v{XR+4*i+d}, s{sK+1}, v{LA}")
            A(f"v_dot2_f32_bf16 v{c+1}, v{XR+4*i+d}, s{sK+2}, v{LA}")
    cen(0)
    for i in range(8):
        if i < 7: cen(i + 1)
        else: A("s_nop 1")
        for d in range(4):
            c = CR + 8 * (i % 2) + 2 * d
            A(f"v_cvt_pk_bf16_f32 v{XR+4*i+d}, v{c}, v{c+1}")
        A.lds(f"ds_write_b128 v{vw}, {v(XR+4*i,4)} offset:{128*i}")
        for d in range(4):
            A(f"v_dot2c_f32_bf16 v{LA+1}, v{XR+4*i+d}, v{XR+4*i+d}")
    A("s_nop 2")
    red8(LA + 1)
    A(f"""
    v_fma_f32 v{LA+1}, v{LA+1}, s{sK+3}, v{LA+2}
    v_sqrt_f32 v{LA+1}, v{LA+1}
    s_mov_b32 exec_lo, 0x01010101
    s_mov_b32 exec_hi, 0x01010101
    """)
    A.lds(f"ds_write_b32 v{LA+3}, v{LA+1}")
    A("s_mov_b64 exec, -1")
    stamp(17)

def prologue():
    A(f"""
    s_cmp_ge_u32 s2, 256
    s_cbranch_scc1 L_end
    {"s_memrealtime s[94:95]" if OPT["stamps"] else ""}
    {"s_memtime s[96:97]" if OPT["stamps"] else ""}
    s_lshr_b32 s{sT}, s2, 3
    s_and_b32 s{sT+1}, s2, 8
    s_add_u32 s{sT+1}, s{sT+1}, 16
    s_load_dwordx2 s[{rX}:{rX+1}], s[0:1], 0
    s_load_dwordx2 s[{rWKV}:{rWKV+1}], s[0:1], s{sT+1}
    s_load_dwordx2 s[{rWQ}:{rWQ+1}], s[0:1], 8
    s_load_dwordx2 s[{rWS}:{rWS+1}], s[0:1], 96
    s_load_dwordx2 s[{rW1}:{rW1+1}], s[0:1], 48
    v_lshrrev_b32 v2, 6, v0
    v_and_b32 v1, 63, v0
    s_and_b32 s{sJ}, s{sT}, 7
    v_readfirstlane_b32 s{sW8}, v2
    """)
    if OPT["codepf"]:
        A(f"""
        s_getpc_b64 s[{sPC}:{sPC+1}]
        s_mul_i32 s{sT+2}, s{sT}, 1152
        v_lshl_add_u32 v3, v0, 7, s{sT+2}
        v_min_u32 v3, L_end-{NAME}_kernel-256, v3
        v_cmp_gt_u32 vcc, 9, v0
        s_and_saveexec_b64 s[{sT+4}:{sT+5}], vcc
        s_cbranch_execz L_nopf
        global_load_dword v27, v3, s[{sPC}:{sPC+1}]
        """)
        A.label("L_nopf")
        A("s_mov_b64 exec, -1")
    A(f"""
    v_mov_b32 v13, 0
    v_and_b32 v4, 7, v1
    v_mov_b32 v{vCNT}, {CNT}
    v_and_b32 v12, 15, v1
    v_lshl_add_u32 v12, v12, 2, v{vCNT}
    ds_write_b32 v12, v13
    s_lshr_b32 s{sQ}, s{sT}, 3
    s_and_b32 s{sX}, s2, 7
    s_lshl_b32 s{sRB}, s{sX}, 2
    s_add_u32 s{sRB}, s{sRB}, s{sQ}
    s_and_b32 s{sW}, s{sW8}, 3
    s_xor_b32 s{sG}, s{sW8}, 4
    s_xor_b32 s{sG}, s{sG}, s{sJ}
    s_lshl_b32 s{sJ7}, s{sJ}, 7
    s_getreg_b32 s{sXCC}, hwreg(HW_REG_XCC_ID, 0, 4)
    """)
    srds([(rX, 2097152), (rWKV, 16384), (rWQ, 524288), (rWS, WS_SIZE)])
    A(f"""
    v_lshrrev_b32 v3, 3, v1
    v_lshlrev_b32 v4, 4, v4
    v_lshl_or_b32 v5, v3, 10, v4
    v_lshlrev_b32 v9, 7, v1
    s_lshl_b32 s{sXO}, s{sRB}, 16
    s_lshl_b32 s{sT+1}, s{sG}, 13
    s_add_u32 s{sXO}, s{sXO}, s{sT+1}
    s_lshr_b32 s{sT+2}, s{sT}, 1
    s_lshl_b32 s{sT+2}, s{sT+2}, 10
    s_lshl_b32 s{sT+3}, s2, 11
    v_and_b32 v6, 16, v1
    v_lshlrev_b32 v6, 2, v6
    v_xor_b32 v6, v5, v6
    v_add_u32 v6, s{sJ7}, v6
    v_lshlrev_b32 v7, 4, v1
    s_cmp_lt_u32 s{sW8}, 4
    s_waitcnt lgkmcnt(0)
    """)
    if OPT["stamps"]:
        A(f"v_mov_b32 v{vST}, 0\nv_writelane_b32 v{vST}, s94, 32\nv_writelane_b32 v{vST}, s96, 0")
        stamp(1)
    A("s_cbranch_scc1 L_att")

def helper():
    A.reset(); A.prio = 0
    ACC = 192; POOL = 16
    NA = 10; NB = 12; DA = 16; DB = 96
    BACC = 192
    UF = 224
    uA, uD0, uD1, uB, vT0 = 248, 249, 250, 251, 255
    BIA = 176; SG = 180
    XC = 188
    vT1, vFC = 190, 191
    vB1B, vB2, vF1 = 252, 253, 254
    vF2, vTG, vZ = 0, 9, 13
    vA0, vA1, vD0, vD1, vH0, vH1, vWO = 2, 3, 6, 5, 4, 8, 14
    vLW = 23
    if OPT["touch0"]:
        A(f"""
        s_cmp_lg_u32 s{sW}, 3
        s_cbranch_scc1 L_not0
        s_mov_b64 exec, 0xff
        buffer_load_dword v27, v9, {s(rWKV,4)}, s{sT+2} offen
        s_mov_b64 exec, 0xffff
        buffer_load_dword v27, v9, {s(rWQ,4)}, s{sT+3} offen
        s_mov_b64 exec, -1
        """)
        A.label("L_not0")
    x_loads()
    A(f"s_cmp_eq_u32 s{sW}, 0\ns_cselect_b32 s{sT}, 0, {OOB}\nv_mov_b32 v20, s{sT}")
    A.vmem(f"buffer_load_dword v20, v20, {s(rWS,4)}, 0 offen sc1", "epoch")
    srds([(rB1, 3584), (rB2, 1024)])
    A(f"""
    s_load_dwordx2 s[{rWO}:{rWO+1}], s[0:1], 32
    s_load_dwordx2 s[{rW2}:{rW2+1}], s[0:1], 64
    s_load_dwordx2 s[{rB1}:{rB1+1}], s[0:1], 56
    s_load_dwordx2 s[{rB2}:{rB2+1}], s[0:1], 72
    s_lshl_b32 s{sT+4}, s{sJ}, 2
    s_add_u32 s{sT+4}, s{sT+4}, s{sW}
    s_lshl_b32 s{sT+5}, s{sT+4}, 6
    s_lshr_b32 s{sT+6}, s{sW}, 1
    s_lshl_b32 s{sT+6}, s{sT+6}, 6
    s_add_u32 s{sT+7}, s{sJ7}, s{sT+6}
    v_and_b32 v10, 32, v1
    v_and_b32 v24, 31, v1
    v_lshlrev_b32 v26, 1, v24
    v_lshl_or_b32 v26, v10, 10, v26
    v_add_u32 v{vB1B}, s{sT+5}, v26
    v_add_u32 v{vB2}, s{sT+7}, v26
    """)
    def bias_loads():
        A.vmem(f"buffer_load_ushort v{BIA}, v{vB1B}, {s(rB1,4)}, 0 offen", "bias")
        A.vmem(f"buffer_load_ushort v{vB1B}, v{vB1B}, {s(rB1,4)}, 0 offen offset:2048", "bias")
        A.vmem(f"buffer_load_ushort v{vB2}, v{vB2}, {s(rB2,4)}, 0 offen", "bias")
    stamp(18)
    ln_setup(vLW)
    srds([(rWO, 524288), (rW1, 1835008), (rW2, 1835008)])
    A.c("---------------- address set-up (s64 = column tile c, s65 = 64*c, s66 = 64*(hw>>1)) ----------------")
    A(f"""
    v_and_b32 v21, 15, v1
    v_lshrrev_b32 v22, 4, v1
    v_lshlrev_b32 v16, 3, v21
    v_lshl_or_b32 v16, v22, 8, v16
    v_add_u32 v16, {WKV}, v16
    s_lshr_b32 s{sT}, s{sJ}, 1
    s_mul_i32 s{sT+1}, s{sT}, {16*XNS}
    v_mul_u32_u24 v17, {XNS}, v21
    v_lshl_add_u32 v17, v22, 4, v17
    v_add_u32 v17, s{sT+1}, v17
    s_lshl_b32 s{sT+1}, s{sT}, 6
    s_add_u32 s{sT+1}, s{sT+1}, {RT}
    v_lshl_add_u32 v174, v21, 2, s{sT+1}
    v_lshl_add_u32 v175, v22, 4, s{sT+1}
    s_lshl_b32 s{sT+2}, s{sQ}, 3
    s_add_u32 s{sT+2}, s{sT+2}, s{sX}
    s_lshl_b32 s{sKST}, s{sT+2}, 1
    s_lshr_b32 s{sT+3}, s{sJ}, 2
    s_add_u32 s{sKST}, s{sKST}, s{sT+3}
    s_lshl_b32 s{sKST}, s{sKST}, 12
    s_add_u32 s{sKST}, s{sKST}, {WS_KV}
    s_lshl_b32 s{sKFL}, s{sT+2}, 3
    s_add_u32 s{sKFL}, s{sKFL}, s{sJ}
    s_lshl_b32 s{sKFL}, s{sKFL}, 6
    s_add_u32 s{sKFL}, s{sKFL}, {WS_FKV}
    v_mul_u32_u24 v{vT1}, {3584-2048}, v22
    v_add_u32 v{vT1}, v{vT1}, v9
    v_mov_b32 v{vT0}, v9
    s_and_b32 s{sT}, s{sT}, 1
    s_lshl_b32 s{sT+1}, s{sT}, 8
    s_lshl_b32 s{sT+2}, s{sT}, 9
    s_add_u32 s{sT+2}, s{sT+2}, 1024
    s_bitcmp1_b32 s{sJ}, 0
    s_cselect_b32 s{sT+1}, s{sT+2}, s{sT+1}
    s_cselect_b32 s{sT+2}, 3, 9
    s_cselect_b32 s{sT+3}, 8, 3
    v_lshl_add_u32 v18, v21, 4, s{sT+1}
    v_and_b32 v25, 1, v22
    v_lshl_add_u32 v18, v25, s{sT+2}, v18
    v_lshrrev_b32 v25, 1, v22
    v_lshl_add_u32 v18, v25, s{sT+3}, v18
    s_and_b32 s{sT}, s{sT+4}, 15
    s_cmp_lg_u32 s{sT}, 4
    s_cbranch_scc1 L_noones
    v_mov_b32 v21, 0x3f803f80
    v_lshlrev_b32 v22, 2, v1
    s_mov_b64 exec, 15
    buffer_store_dword v21, v22, {s(rWS,4)}, s{sKST} offen offset:2048 sc1
    s_add_u32 s{sT}, s{sKST}, {KVL}
    buffer_store_dword v21, v22, {s(rWS,4)}, s{sT} offen offset:2048
    s_mov_b64 exec, -1
    """)
    A.label("L_noones")
    tr_common(19, 25)
    A(f"""
    s_lshl_b32 s{sRING}, s{sW}, 11
    s_add_u32 s{sRING}, s{sRING}, {RING}
    v_and_b32 v26, 7, v1
    s_and_b32 s{sT}, s{sKFL}, 0xfffffe00
    v_lshl_add_u32 v{vFC}, v26, 6, s{sT}
    v_and_b32 v{uA}, 0x38, v19
    v_and_b32 v25, 12, v1
    v_lshl_or_b32 v{uA}, v25, 4, v{uA}
    v_lshl_or_b32 v{uA}, v10, 4, v{uA}
    v_add_u32 v{uA}, s{sRING}, v{uA}
    v_mul_u32_u24 v24, {XNS}, v24
    v_lshrrev_b32 v25, 1, v10
    v_add_u32 v{uB}, v24, v25
    s_mov_b32 s{sSEG}, s{sT+5}
    """)
    A("s_barrier")
    A(f"""
    v_lshrrev_b32 v25, 2, v1
    v_mul_u32_u24 v{uD0}, 3584, v25
    v_and_b32 v24, 3, v1
    v_lshl_add_u32 v{uD0}, v24, 4, v{uD0}
    v_add_u32 v{uD1}, {16*3584-1024}, v{uD0}
    v_mov_b32 v{BIA+1}, 0
    v_mov_b64 {v(BIA+2,2)}, 0
    v_mov_b32 v{SG+1}, 0
    v_mov_b64 {v(SG+2,2)}, 0
    v_mov_b32 v{SG+5}, 0
    v_mov_b64 {v(SG+6,2)}, 0
    s_mul_i32 s{sT+8}, s{sRB}, {HRB}
    s_add_u32 s{sT+8}, s{sT+8}, {WS_HIM}
    s_lshl_b32 s{sT+9}, s{sRB}, 12
    s_add_u32 s{sT+9}, s{sT+9}, {WS_FH}
    v_lshlrev_b32 v{vWO}, 10, v3
    v_and_b32 v25, 6, v3
    v_xor_b32 v25, v25, v26
    v_lshl_or_b32 v{vWO}, v25, 4, v{vWO}
    v_add_u32 v{vWO}, s{sJ7}, v{vWO}
    v_lshl_or_b32 v{vA0}, v10, 4, v19
    v_xor_b32 v{vA0}, s{sT+6}, v{vA0}
    v_add_u32 v{vA0}, s{sRING}, v{vA0}
    v_xor_b32 v{vA1}, 64, v{vA0}
    v_add_u32 v{vD1}, {8*1024-1024}, v{vD0}
    s_and_b32 s{sT}, s{sW}, 1
    s_lshl_b32 s{sT}, s{sT}, 10
    s_xor_b32 s{sT+1}, s{sT}, 0x400
    s_add_u32 s{sT}, s{sT}, s{sT+8}
    s_add_u32 s{sT+1}, s{sT+1}, s{sT+8}
    v_add_u32 v{vH0}, s{sT}, v7
    v_add_u32 v{vH1}, s{sT+1}, v7
    s_lshl_b32 s{sBW}, s{sW}, 18
    s_add_u32 s{sLW}, s{sBW}, {16*16384}
    s_lshl_b32 s{sCW}, s{sJ}, 15
    s_add_u32 s{sCW}, s{sCW}, s{sBW}
    s_lshl_b32 s{sBH}, s{sW}, 15
    s_add_u32 s{sLH}, s{sBH}, {16*2048}
    s_lshl_b32 s{sCH}, s{sJ}, 12
    s_add_u32 s{sCH}, s{sCH}, s{sBH}
    s_sub_u32 s{sT}, s{sJ}, 6
    s_cmp_ge_u32 s{sJ}, 6
    s_cselect_b32 s{sT}, s{sT}, s{sJ}
    s_lshl_b32 s{sRH}, s{sT}, 12
    s_mul_i32 s{sH1}, s{sW}, {12*2048}
    s_add_u32 s{sH1}, s{sH1}, {64*2048}
    s_lshl_b32 s{sT}, s{sW}, 9
    s_add_u32 s{sT}, s{sT}, s{sT+9}
    v_lshl_add_u32 v{vF1}, v26, 6, s{sT}
    s_mul_i32 s{sT}, s{sW}, {6*64}
    s_add_u32 s{sT}, s{sT}, s{sT+9}
    s_add_u32 s{sT}, s{sT}, {32*64}
    v_min_u32 v{vF2}, 5, v1
    v_lshl_add_u32 v{vF2}, v{vF2}, 6, s{sT}
    s_lshl_b32 s{sWOS}, s{sJ}, 3
    s_add_u32 s{sWOS}, s{sWOS}, s{sW}
    s_add_u32 s{sWOS}, s{sWOS}, 12
    s_lshl_b32 s{sWOS}, s{sWOS}, 13
    s_lshl_b32 s{sWOD}, s{sW}, 10
    s_lshl_b32 s{sHST}, s{sT+4}, 12
    s_add_u32 s{sHST}, s{sHST}, s{sT+8}
    s_add_u32 s{sFLG}, s{sT+5}, s{sT+9}
    s_add_u32 s{sT+10}, s{sQ}, s{sW}
    s_and_b32 s{sT+10}, s{sT+10}, 3
    s_lshl_b32 s{sT+11}, s{sT+10}, 14
    s_lshl_b32 s{sT+10}, s{sT+10}, 17
    """)
    if OPT["st1"]:
        A("s_waitcnt lgkmcnt(0)")
        s_touch(rW1, 7168, sW8, 896, 0, 14)
    stamp(20)
    A("s_setprio 3")
    layernorm(vLW)
    A(f"s_cmp_lg_u32 s{sW}, 0\ns_cbranch_scc1 L_nokv")
    A.c("---------------- K or V for 16 rows ----------------")
    KX = 28; KW = 92; KD = 156; NK = OPT["kacc"]
    A(f"""
    s_waitcnt vmcnt(0)
    v_add_u32 v20, 0x9E3779B9, v20
    s_mov_b64 exec, 1
    ds_write_b32 v{vCNT}, v20 offset:{C_TAG}
    ds_add_u32 v{vCNT}, v{vONE} offset:{C_X}
    s_mov_b64 exec, -1
    """)
    lds_spin(C_LN, 5, 27, "ln")
    stamp(3)
    A(f"s_bitcmp1_b32 s{sJ}, 0\ns_cbranch_scc1 L_isv")
    def kv_gemm(isv):
        A.reset()
        def rd(ks):
            A.lds(f"ds_read_b128 {v(KX+4*ks,4)}, v17 offset:{64*ks}", f"k{ks}")
            A.lds(f"ds_read_b64_tr_b16 {v(KW+4*ks,2)}, v16 offset:{1024*ks}", f"k{ks}")
            A.lds(f"ds_read_b64_tr_b16 {v(KW+4*ks+2,2)}, v16 offset:{1024*ks+128}", f"k{ks}")
        for ks in range(8): rd(ks)
        stamp(25)
        for g in range(4):
            if g == 2: stamp(26)
            A.wait(lg=[f"k{4*g+3}"])
            for ks in range(4 * g, 4 * g + 4):
                a, b = (KX, KW) if isv else (KW, KX)
                d = KD + 4 * (ks % NK)
                A(f"v_mfma_f32_16x16x32_bf16 {v(d,4)}, {v(a+4*ks,4)}, {v(b+4*ks,4)}, {v(d,4) if ks >= NK else 0}")
            if g < 2:
                for ks in range(8 + 4 * g, 12 + 4 * g): rd(ks)
            if g == 1:
                if isv: A.lds(f"ds_read_b128 v[24:27], v175", "sg")
                else:
                    for r in range(4): A.lds(f"ds_read_b32 v{24+r}, v174", "sg")
        A.wait(lg=["sg"])
    kv_gemm(False)
    A("s_branch L_kvd")
    A.label("L_isv")
    kv_gemm(True)
    A.label("L_kvd")
    stamp(27)
    A(f"""
    s_mov_b64 exec, 1
    ds_add_u32 v{vCNT}, v{vONE} offset:{C_KV}
    s_mov_b64 exec, -1
    v_mov_b32 v21, s{sXCC}
    v_add3_u32 v22, v20, v21, 1
    s_add_u32 s{sT}, s{sKST}, {KVL}
    s_lshl_b32 s{sT+1}, s{sKFL}, 1
    s_add_u32 s{sT+1}, s{sT+1}, {WS_FKL - 2*WS_FKV}
    """)
    for r in range(4): A(f"v_rcp_f32 v{24+r}, v{24+r}")
    for n in range(1, NK):
        for r in range(4): A(f"v_add_f32 v{KD+r}, v{KD+r}, v{KD+4*n+r}")
    for r in range(4): A(f"v_mul_f32 v{KD+r}, v{KD+r}, v{24+r}")
    A(f"""
    v_cvt_pk_bf16_f32 v{KD+16}, v{KD}, v{KD+1}
    v_cvt_pk_bf16_f32 v{KD+17}, v{KD+2}, v{KD+3}
    """)
    def kv_global():
        A(f"""
        s_waitcnt vmcnt(0)
        s_mov_b64 exec, 1
        buffer_store_dwordx2 v[20:21], v{vZ}, {s(rWS,4)}, s{sKFL} offen sc1
        s_mov_b64 exec, -1
        """)
    if OPT["kvloc"]:
        A(f"""
        buffer_store_dwordx2 {v(KD+16,2)}, v18, {s(rWS,4)}, s{sT} offen
        buffer_store_dwordx2 {v(KD+16,2)}, v18, {s(rWS,4)}, s{sKST} offen sc1
        """)
        stamp(28)
        A(f"""
        s_waitcnt vmcnt(1)
        s_mov_b64 exec, 1
        buffer_store_dword v22, v{vZ}, {s(rWS,4)}, s{sT+1} offen
        s_mov_b64 exec, -1
        """)
    else:
        A(f"buffer_store_dwordx2 {v(KD+16,2)}, v18, {s(rWS,4)}, s{sKST} offen sc1")
    stamp(4)
    A("s_setprio 0")
    kv_global()
    stamp(21)
    A("s_branch L_bar1")
    A.label("L_nokv")
    A.prio = 3
    A(f"""
    s_cmp_lg_u32 s{sW}, 1
    s_cbranch_scc1 L_nosig
    """)
    lds_signal(C_LN)
    A.label("L_nosig")
    A.reset()
    A("s_setprio 0")
    if OPT["st2"]:
        s_touch(rWO, 2048, sW, 672, -672, 11)
        s_touch(rW2, 4096, sW, 256, 52 * 64 - 256, 4)
    dma_rows(rWQ, 6, sT + 10, sT + 11, WQ, 16, "dma", cap=OPT["wqcap"])
    A("s_waitcnt vmcnt(0)")
    lds_signal(C_X)
    if OPT["early"]: lds_spin(C_KV, 1, 27, "kv", sleep=1)
    A.label("L_bar1")
    A(f"""
    s_cmp_lt_u32 s{sJ}, 6
    s_mov_b32 s{rW1B}, s{rW1}
    s_mov_b32 s{rW1B+1}, s{rW1+1}
    s_cselect_b32 s{rW1B+2}, s{rW1+2}, 0
    s_mov_b32 s{rWSB}, s{rWS}
    s_mov_b32 s{rWSB+1}, s{rWS+1}
    s_cselect_b32 s{rWSB+2}, s{rWS+2}, 0
    """)
    stamp(5)
    A.reset()
    tw1a = lambda: touch(2, [(rW1, vT1, 10, 7168, 0, 0xffffffff)])
    tw2a = lambda: touch(3, [(rWO, vT0, 10, 2048, 0, 0xffff), (rW2, vT0, 10, 4096, 0, 0xffffffff)])
    tw1b = lambda: touch(2, [(rW1, vT1, 10, 7168, 2048, 0x0fff0fff)])
    tw2b = lambda: touch(3, [(rW2, vT0, 10, 3072, 1 << 20, 0xffffff)])
    st = dict(seq=[], ni=0, nc=0)
    NF = OPT["nfly"]; CAP = OPT["cap"]
    def slab_dma(n):
        kind, ks = st["seq"][n]
        if n >= NS:
            k2, s2_ = st["seq"][n - NS]
            A.wait(lg=[f"r{k2}{s2_}", f"r{k2}{s2_+1}"] if k2 != "d" else [f"r{k2}{s2_}"])
        cap_vm(CAP)
        A(f"s_add_u32 m0, s{sRING}, {8192*SLOT[n%NS]}")
        if kind != "d":
            if ks == 0: A(f"s_add_u32 s{sCB}, s{sSEG}, {0 if kind == 'a' else 2048}")
            else: A(f"s_add_u32 s{sCB}, s{sCB}, {32*3584}")
            srd, d0, d1, so = (rW1 if kind == "a" else rW1B), uD0, uD1, sCB
        else:
            if ks == 0: A("s_nop 0")
            elif ks == 16:
                A(f"""
                s_lshl_b32 s{sBW}, s{sH1}, 3
                s_add_u32 s{sLW}, s{sBW}, {12*16384}
                s_lshl_b32 s{sCW}, s{sRH}, 3
                s_add_u32 s{sCW}, s{sCW}, s{sBW}
                """)
            else:
                A(f"s_add_u32 s{sCW}, s{sCW}, {16*1024}")
                if ks % 2 == 0: A(f"s_cmp_eq_u32 s{sCW}, s{sLW}\ns_cselect_b32 s{sCW}, s{sBW}, s{sCW}")
            srd, d0, d1, so = rW2, vD0, vD1, sCW
        A.vmem(f"buffer_load_dwordx4 v{d0}, {s(srd,4)}, s{so} offen lds", f"w{kind}{ks}")
        A.vmem(f"buffer_load_dwordx4 v{d1}, {s(srd,4)}, s{so} offen offset:1024 lds", f"w{kind}{ks}" if kind == "d" else f"w{kind}{ks+1}")
    def fill(nfly):
        while st["ni"] < len(st["seq"]) and st["ni"] < st["nc"] + nfly:
            slab_dma(st["ni"]); st["ni"] += 1
    def d_read():
        n = st["nc"]; kind, ks = st["seq"][n]
        assert kind == "d"
        o = 8192 * SLOT[n % NS]; t = f"rd{ks}"
        A.wait(vm=[f"wd{ks}"])
        b = DA + 8 * (ks % NA)
        A.lds(f"ds_read_b64_tr_b16 {v(b,2)}, v{vA0} offset:{o}", t)
        A.lds(f"ds_read_b64_tr_b16 {v(b+2,2)}, v{vA0} offset:{o+1024}", t)
        A.lds(f"ds_read_b64_tr_b16 {v(b+4,2)}, v{vA1} offset:{o}", t)
        A.lds(f"ds_read_b64_tr_b16 {v(b+6,2)}, v{vA1} offset:{o+1024}", t)
        st["nc"] += 1
    def u_read(kind, ks):
        while st["seq"][st["nc"]][0] == "d": d_read()
        n = st["nc"]
        assert st["seq"][n] == (kind, ks & ~1), (st["seq"][n], kind, ks)
        o = 8192 * SLOT[n % NS] + 1024 * (ks & 1); t = f"r{kind}{ks}"
        b = UF + 12 * (ks % 2)
        A.lds(f"ds_read_b128 {v(b+4,4)}, v{uB} offset:{32*ks}", t)
        A.lds(f"ds_read_b128 {v(b+8,4)}, v{uB} offset:{32*XNS+32*ks}", t)
        A.wait(vm=[f"w{kind}{ks}"])
        A.lds(f"ds_read_b64_tr_b16 {v(b,2)}, v{uA} offset:{o}", t)
        A.lds(f"ds_read_b64_tr_b16 {v(b+2,2)}, v{uA} offset:{o+256}", t)
        if ks & 1: st["nc"] += 1
    nh = [0]; nwo = [0]
    def adv_h():
        ks = nh[0]
        cap_vm(CAP)
        b = DB + 8 * (ks % NB)
        if ks == 16:
            A(f"s_mov_b32 s{sBH}, s{sH1}\ns_add_u32 s{sLH}, s{sH1}, {12*2048}\ns_add_u32 s{sCH}, s{sH1}, s{sRH}")
        elif ks:
            A(f"s_add_u32 s{sCH}, s{sCH}, 2048")
            if ks % 2 == 0: A(f"s_cmp_eq_u32 s{sCH}, s{sLH}\ns_cselect_b32 s{sCH}, s{sBH}, s{sCH}")
        A.vmem(f"buffer_load_dwordx4 {v(b,4)}, v{vH0}, {s(rWS,4)}, s{sCH} offen {OPT['hld']}", f"h{ks}")
        A.vmem(f"buffer_load_dwordx4 {v(b+4,4)}, v{vH1}, {s(rWS,4)}, s{sCH} offen {OPT['hld']}", f"h{ks}")
        nh[0] += 1
    def adv_wo():
        if nwo[0] >= 16: return
        i = (nwo[0] + 4) % 16
        cap_vm(CAP)
        A(f"""
        s_add_u32 m0, s{sWOD}, {WO + 4096*i}
        s_add_u32 s{sWOS}, s{sWOS}, 32768
        s_and_b32 s{sWOS}, s{sWOS}, 0x7ffff
        """)
        A.vmem(f"buffer_load_dwordx4 v{vWO}, {s(rWO,4)}, s{sWOS} offen lds", "wo")
        nwo[0] += 1
    def flag_issue(vf, name):
        A.vmem(f"buffer_load_dword v10, v{vf}, {s(rWS,4)}, 0 offen sc1", name)
    def flag_check(vf, name, sleep=2):
        A.wait(vm=[name])
        A(f"""
        s_setprio 2
        v_cmp_ne_u32 vcc, s{sTAG}, v10
        s_cbranch_vccz L_done_{name}
        """)
        keep = list(A.vm)
        poll(vf, 10, name, sleep=sleep)
        A.vm = keep
        A("s_setprio 0")
    def xcc_issue():
        A.vmem(f"buffer_load_dwordx2 {v(XC,2)}, v{vFC}, {s(rWS,4)}, 0 offen sc1", "xc")
    def xcc_check():
        A.wait(vm=["xc", "bias"])
        A(f"""
        s_setprio 2
        v_cmp_ne_u32 vcc, s{sTAG}, v{XC}
        v_cmp_ne_u32 s[{sT}:{sT+1}], s{sXCC}, v{XC+1}
        s_nop 1
        s_or_b64 vcc, vcc, s[{sT}:{sT+1}]
        s_cselect_b32 s{sLOC}, 0, {0 if OPT["force_global"] else 1}
        v_mov_b32 v10, s{sLOC}
        v_lshl_or_b32 v{BIA}, v{BIA}, 16, v{BIA}
        s_and_b32 s{sT}, s{sW}, 1
        s_lshl_b32 s{sT}, s{sT}, 7
        s_add_u32 s{sT}, s{sT}, {RT}
        v_and_b32 v{vFC}, 31, v1
        v_lshl_add_u32 v{vFC}, v{vFC}, 2, s{sT}
        s_setprio 0
        s_mov_b64 exec, 1
        """)
        A.lds(f"ds_add_u32 v{vCNT}, v10 offset:{C_LOC}")
        A("s_mov_b64 exec, -1")
    def up_phase(kind, hooks):
        u_read(kind, 0)
        for ks in range(32):
            if ks % 4 == 0: hstamp()
            if ks + 1 < 32: u_read(kind, ks + 1)
            for h in hooks.get(ks, []): h()
            A.wait(lg=[f"r{kind}{ks}"])
            b = UF + 12 * (ks % 2)
            for rt in range(2):
                A(f"v_mfma_f32_32x32x16_bf16 {v(BACC+16*rt,16)}, {v(b,4)}, {v(b+4+4*rt,4)}, {v(BACC+16*rt,16) if ks else 0}")
            fill(NF)
        for rt in range(2):
            A(f"v_mfma_f32_32x32x16_bf16 {v(BACC+16*rt,16)}, {v(BIA,4)}, {v(SG+4*rt,4)}, {v(BACC+16*rt,16)}")
    def up_epilogue(nxt, srd, last=False):
        A(f"s_nop 10\ns_setprio 2\nv_lshl_or_b32 v{BIA}, v{nxt}, 16, v{nxt}")
        if last:
            A.wait(lg=["sg2"])
            A(f"v_mul_f32 v{SG+4}, v{XC}, v{XC}")
            split(SG, SG + 4, XC)
        for rt in range(2):
            a = BACC + 16 * rt
            for half in range(2):
                for r in range(8): A(f"v_mul_f32 v{a+8*half+r}, v{a+8*half+r}, |v{a+8*half+r}|")
                d = a + 8 * half
                for p in range(4): A(f"v_cvt_pk_bf16_f32 v{d+p}, v{d+2*p}, v{d+2*p+1}")
                for p in range(4): A(f"v_pk_max_i16 v{d+p}, v{d+p}, 0")
                x = f"buffer_store_dwordx4 {v(d,4)}, v7, {s(srd,4)}, s{sHST} offen offset:{2048*half+1024*rt}"
                if OPT["hloc"] >= 2: store2(x, "nt" if OPT["hloc"] == 2 else "", "hst", cmp=(rt + half == 0))
                else: A.vmem(x + " sc1", "hst")
        A(f"s_setprio 0\ns_add_u32 s{sHST}, s{sHST}, {32*4096}")
    def h_flag():
        A.wait(vm=["hst"])
        flag_store(f"s{sFLG}", vTG, vZ, local=OPT["hloc"] >= 1)
        A(f"s_add_u32 s{sFLG}, s{sFLG}, {32*64}")
    seq = []; nd = 0
    for kind, (d0_, dstep) in (("a", OPT["da"]), ("b", OPT["db"])):
        for ks in range(0, 32, 2):
            if ks >= d0_ and (ks - d0_) % dstep == 0 and nd < NA: seq.append(("d", nd)); nd += 1
            seq.append((kind, ks))
    assert nd == NA
    seq += [("d", k) for k in range(NA, 28)]
    st.update(seq=seq, ni=0, nc=0)
    fill(OPT["early"])
    if OPT["st2"]:
        A("s_waitcnt lgkmcnt(0)")
        s_touch(rW2, 4096, sW, 832, 0, 13)
    def split(d, x, t):
        A(f"""
        v_and_b32 v{t}, 0xffff0000, v{x}
        v_sub_f32 v{x}, v{x}, v{t}
        v_cvt_pk_bf16_f32 v{d}, v{t}, v{x}
        """)
    lds_spin(C_X, 8, 27, "xh", sleep=1)
    A(f"""
    v_and_b32 v24, 31, v1
    v_lshl_add_u32 v24, v24, 2, v{vCNT}
    ds_read_b32 v{vTG}, v{vCNT} offset:{C_TAG}
    ds_read_b32 v25, v24 offset:64
    ds_read_b32 v26, v24 offset:{64+128}
    s_waitcnt lgkmcnt(0)
    v_readfirstlane_b32 s{sTAG}, v{vTG}
    """)
    split(SG, 25, 27); split(SG + 4, 26, 27)
    A("s_barrier")
    A("s_barrier")
    fill(2)
    if OPT["t1"] and not OPT["st1"]: tw1a()
    fill(4)
    hstamp()
    A.c("---------------- FFN up, first column tile c = 4*j + hw ----------------")
    hooks = {OPT["xc"]: [xcc_issue], OPT["xc"] + 4: [xcc_check], 2: [bias_loads]}
    if OPT["t2"] is not None and not OPT["st2"]: hooks.setdefault(OPT["t2"], []).append(tw2a)
    if OPT["t3"] is not None and not OPT["st1"]: hooks.setdefault(OPT["t3"], []).append(tw1b)
    w0, w1_ = OPT["woa"]
    for i in range(12): hooks.setdefault(w0 + (i * w1_) // 12, []).append(adv_wo)
    up_phase("a", hooks)
    stamp(7)
    if OPT["t4"]: tw2b()
    up_epilogue(vB1B, rWS)
    A.c("---------------- FFN up, second column tile c = 32 + 4*j + hw (empty for j >= 6) ----------------")
    hooks = {OPT["fa"]: [h_flag], OPT["p1"]: [lambda: flag_issue(vF1, "h1")], OPT["p1"] + 3: [lambda: flag_check(vF1, "h1")]}
    h0 = OPT["p1"] + 4
    for i in range(10): hooks.setdefault(h0 + (i * (32 - h0)) // 10, []).append(adv_h)
    up_phase("b", hooks)
    assert nh[0] == 10 and nwo[0] == 12
    stamp(24)
    lds_signal(C_XN)
    A.lds(f"ds_read_b32 v{XC}, v{vFC}", "sg2")
    up_epilogue(vB2, rWSB, True)
    A.c("---------------- FFN down: this wave's quarter of K, output tile 64 x 64 ----------------")
    stamp(8)
    A(f"v_mfma_f32_32x32x16_bf16 {v(ACC,16)}, {v(BIA,4)}, {v(SG,4)}, 0")
    def dn_mfma(ks):
        a = DA + 8 * (ks % NA); b = DB + 8 * (ks % NB)
        return [f"v_mfma_f32_32x32x16_bf16 {v(ACC+16*q,16)}, {v(a+4*(q//2),4)}, {v(b+4*(q%2),4)}, {v(ACC+16*q,16) if (ks or q == 0) else 0}" for q in range(4)]
    def gap(n0):
        n = OPT["pace"] - (len(A.L) - n0)
        if n >= 0: A(f"s_nop {n}")
    ok2 = False; okx = False; sigw = False
    D1 = OPT["d1"]
    for ks in range(D1):
        if ks % 2 == 0 and ks < 16: hstamp()
        mf = dn_mfma(ks)
        A.wait(vm=[f"h{ks}"], lg=[f"rd{ks}"])
        A(mf[0]); A(mf[1])
        n0 = len(A.L)
        fill(NF)
        if ks == OPT["fb"]: h_flag()
        if ks == OPT["xs"]:
            A("s_setprio 2")
            lds_spin(C_XN, 4, 10, "xn")
            A("s_setprio 0"); okx = True
        if ks == OPT["p2"]: flag_issue(vF2, "h2")
        if ks == OPT["p2"] + 2: flag_check(vF2, "h2"); ok2 = True
        if ks >= OPT["hq"] and nh[0] < min(ks + NB, 28 if ok2 else 16): adv_h()
        if okx: adv_wo()
        if ks == OPT["xs"] + 7:
            assert nwo[0] == 16
            A.wait(vm=["wo"]); lds_signal(C_W); sigw = True
        gap(n0)
        A(mf[2]); A(mf[3])
        n0 = len(A.L)
        if ok2 and nh[0] < min(ks + 1 + NB, 28): adv_h()
        if st["nc"] < len(st["seq"]): d_read()
        gap(n0)
    fill(NF)
    assert sigw
    stamp(9); hstamp()
    while nh[0] < 28: adv_h()
    assert st["ni"] == len(st["seq"])
    stamp(10); hstamp()
    def g_setup():
        for sl in range(1, 4):
            A(f"""
            s_xor_b32 s{sT}, s{sW}, {sl}
            s_mul_i32 s{sT}, s{sT}, 12288
            s_add_u32 s{sT}, s{sT}, {GRED + 4096*(sl-1)}
            v_add_u32 v{vG[sl-1]}, s{sT}, v7
            """)
        A(f"""
        s_mul_i32 s{sT}, s{sW}, 12288
        s_add_u32 s{sT}, s{sT}, {GRED}
        v_add_u32 v7, s{sT}, v7
        s_and_b32 s{sT}, s{sW}, 1
        s_mul_i32 s{sT+1}, s{sT}, {32*GIS}
        s_lshr_b32 s{sT+2}, s{sW}, 1
        s_lshl_b32 s{sT+2}, s{sT+2}, 7
        s_add_u32 s{sT+1}, s{sT+1}, s{sT+2}
        s_add_u32 s{sT+1}, s{sT+1}, {GIM}
        s_lshl_b32 s{sT}, s{sT}, 7
        s_add_u32 s{sT}, s{sT}, {RT}
        v_and_b32 v8, 31, v1
        v_lshl_add_u32 v0, v8, 2, s{sT}
        ds_read_b32 v0, v0
        v_mul_u32_u24 v8, {GIS}, v8
        v_and_b32 v9, 32, v1
        v_lshrrev_b32 v9, 1, v9
        v_add3_u32 v8, v8, v9, s{sT+1}
        s_waitcnt lgkmcnt(0)
        v_mul_f32 v0, v0, v0
        v_rcp_f32 v14, v0
        s_nop 0
        v_mul_f32 v14, {hex(f2u(-math.log2(math.e)))}, v14
        """)
        A.lg = []
    vG = (4, 5, 6)
    g_setup()
    lds_spin(C_C, 4, 10, "c", sleep=1)
    stamp(11)
    for ks in range(D1, 28):
        A.wait(vm=[f"h{ks}"], lg=[f"rd{ks}"])
        mf = dn_mfma(ks)
        for x in (mf[1:] + mf[:1] if ks == 27 else mf): A(x)
        if st["nc"] < len(st["seq"]): d_read()
    A.c("---------------- reduce the K-split partials, silu, hand the gate tile over ----------------")
    if D1 < 28: A("s_nop 8")
    for sl in range(1, 4):
        for q in range(4):
            A.lds(f"ds_write_b128 v{vG[sl-1]}, {v(ACC+16*sl+4*q,4)} offset:{1024*q}")
    lds_signal(C_G)
    lds_spin(C_G, 4, 10, "g")
    stamp(12)
    for q in range(4):
        for sl in range(1, 4):
            A.lds(f"ds_read_b128 {v(POOL+16*(sl-1)+4*q,4)}, v7 offset:{4096*(sl-1)+1024*q}", f"g{q}")
    T = POOL + 48
    for q in range(4):
        A.wait(lg=[f"g{q}"])
        for sl in range(1, 4):
            for r in range(4 * q, 4 * q + 4):
                A(f"v_add_f32 v{ACC+r}, v{ACC+r}, v{POOL+16*(sl-1)+r}")
        for r in range(4 * q, 4 * q + 4): A(f"v_mul_f32 v{T+r}, v14, v{ACC+r}")
        for r in range(4 * q, 4 * q + 4): A(f"v_exp_f32 v{T+r}, v{T+r}")
        for r in range(4 * q, 4 * q + 4): A(f"v_fma_f32 v{T+r}, v{T+r}, v0, v0")
        for r in range(4 * q, 4 * q + 4): A(f"v_rcp_f32 v{T+r}, v{T+r}")
        for r in range(4 * q, 4 * q + 4): A(f"v_mul_f32 v{T+r}, v{ACC+r}, v{T+r}")
        A.lds(f"ds_write_b128 v8, {v(T+4*q,4)} offset:{32*q}")
    A.wait(lg="all")
    stamp(13)
    stamp(31); stamp_flush()
    A("s_barrier\ns_endpgm")

def attention():
    A.reset(); A.prio = 0
    A.label("L_att")
    OA = 128
    QF = 96
    SB = 64
    KV0 = 28
    vIDX, vKO, vV0, vV1 = 6, 9, 24, 25
    vRW = 16
    vQT, vQX, vLW, vQW = 116, 117, 118, 119; vQR = (120, 121, 122, 123)
    vX, vE0, vO0, vFO, vOUT, vG, vZ = 2, 0, 4, 10, 8, 14, 13
    sO, sLT, sGOT = 74, 87, 55
    sOST, sQS, sF0, sOFL, sXR = 72, 73, 82, 83, 86
    A(f"s_load_dwordx2 s[{rOUT}:{rOUT+1}], s[0:1], 80")
    srds([(rOUT, 2097152)])
    ln_setup(vLW)
    tr_common(vQT, 3)
    A(f"""
    s_lshr_b32 s{sT}, s{sW}, 1
    s_and_b32 s{sT+1}, s{sW}, 1
    s_lshl_b32 s{sT+2}, s{sT}, 6
    v_and_b32 v3, 32, v1
    v_lshl_or_b32 v{vQT}, v3, 5, v{vQT}
    v_xor_b32 v{vQT}, s{sT+2}, v{vQT}
    v_add_u32 v{vQT}, {WQ}, v{vQT}
    s_mul_i32 s{sT+3}, s{sT+1}, {32*XNS}
    s_lshl_b32 s{sT+5}, s{sW}, 16
    s_add_u32 s{sT+5}, s{sT+5}, {WS_KV}
    s_add_u32 s{sT+6}, s{sT+5}, 1024
    s_add_u32 s{sT+7}, s{sT+5}, 2048
    v_add_u32 v{vKO}, s{sT+5}, v7
    v_and_b32 v4, 31, v1
    v_mul_u32_u24 v4, {XNS}, v4
    v_lshrrev_b32 v3, 1, v3
    v_add3_u32 v{vQX}, v4, v3, s{sT+3}
    s_lshl_b32 s{sT+4}, s{sT}, 2
    s_add_u32 s{sT+4}, s{sT+4}, s{sT+1}
    s_lshl_b32 s{sT+4}, s{sT+4}, 10
    s_add_u32 s{sT+4}, s{sT+4}, {QX}
    v_add_u32 v{vQW}, s{sT+4}, v7
    """)
    v_lanes(vV0, vV1, 3, f"s{sT+6}", f"s{sT+7}")
    for p in range(4):
        A(f"""
        s_add_u32 s{sT}, s{sW}, {1+p}
        s_and_b32 s{sT}, s{sT}, 3
        s_lshl_b32 s{sT+1}, s{sT}, 11
        s_add_u32 s{sT+1}, s{sT+1}, {QX}
        v_add_u32 v{vQR[p]}, s{sT+1}, v7
        """)
        if p < 3:
            A(f"""
            s_mul_i32 s{sT+2}, s{sT}, {3*4096}
            s_add_u32 s{sT+2}, s{sT+2}, {ORED + 4096*p}
            v_add_u32 v{vRW+p}, s{sT+2}, v7
            s_mul_i32 s{sT+2}, s{sT}, {3*512}
            s_add_u32 s{sT+2}, s{sT+2}, {ORL + 512*p}
            v_lshl_add_u32 v{vRW+3+p}, v1, 2, s{sT+2}
            """)
    A(f"""
    s_mul_i32 s{sT+2}, s{sW}, {3*4096}
    s_add_u32 s{sT+2}, s{sT+2}, {ORED}
    v_add_u32 v{vRW+6}, s{sT+2}, v7
    s_mul_i32 s{sT+2}, s{sW}, {3*512}
    s_add_u32 s{sT+2}, s{sT+2}, {ORL}
    v_lshl_add_u32 v{vRW+7}, v1, 2, s{sT+2}
    s_lshl_b32 s{sT}, s{sW}, 12
    s_add_u32 s{sT}, s{sT}, {WS_FKV}
    v_lshl_add_u32 v3, v1, 6, s{sT}
    s_lshl_b32 s{sT+1}, s{sX}, 9
    s_add_u32 s{sF0}, s{sT+1}, s{sT}
    s_lshl_b32 s{sCUR}, s{sX}, 13
    """)
    if OPT["kvloc"]:
        A(f"""
        s_lshl_b32 s{sF0}, s{sF0}, 1
        s_add_u32 s{sF0}, s{sF0}, {WS_FKL - 2*WS_FKV}
        s_add_u32 s{sCUR}, s{sCUR}, {KVL}
        """)
    A(f"""
    s_mov_b32 s{sQS}, {hex(f2u(0.25*math.log2(math.e)))}
    s_lshl_b32 s{sT}, s{sJ}, 2
    s_add_u32 s{sT}, s{sT}, s{sW}
    s_lshl_b32 s{sT+1}, s{sRB}, 5
    s_add_u32 s{sT}, s{sT}, s{sT+1}
    s_lshl_b32 s{sOST}, s{sT}, 11
    s_add_u32 s{sOST}, s{sOST}, {WS_OIM}
    s_lshl_b32 s{sOFL}, s{sT}, 6
    s_add_u32 s{sOFL}, s{sOFL}, {WS_FO}
    s_lshl_b32 s{sXR}, s{sRB}, 16
    s_add_u32 s{sXR}, s{sXR}, s{sJ7}
    """)
    A(f"""
    v_and_b32 v60, 15, v1
    v_lshrrev_b32 v61, 4, v1
    v_and_b32 v62, 16, v1
    v_and_b32 v63, 32, v1
    s_lshl_b32 s{sT}, s{sW}, 4
    v_add_u32 v{vG}, s{sT}, v60
    v_lshlrev_b32 v{vOUT}, 10, v{vG}
    v_lshl_or_b32 v{vX}, v61, 3, v{vOUT}
    v_lshl_or_b32 v{vOUT}, v62, 1, v{vOUT}
    v_lshrrev_b32 v64, 1, v63
    v_or_b32 v{vOUT}, v{vOUT}, v64
    v_mul_u32_u24 v{vG}, {GIS}, v{vG}
    v_lshl_add_u32 v{vG}, v61, 4, v{vG}
    v_add_u32 v{vG}, {GIM}, v{vG}
    v_and_b32 v{vE0}, 3, v1
    v_lshlrev_b32 v{vE0}, 3, v{vE0}
    v_and_b32 v64, 28, v1
    v_lshl_or_b32 v{vE0}, v64, 5, v{vE0}
    v_lshl_or_b32 v{vE0}, v63, 6, v{vE0}
    v_and_b32 v64, 24, v1
    v_lshl_or_b32 v{vE0}, v64, 2, v{vE0}
    v_add_u32 v{vE0}, {WO}, v{vE0}
    s_lshr_b32 s{sT}, s{sW}, 1
    s_lshl_b32 s{sT}, s{sT}, 10
    s_and_b32 s{sT+1}, s{sW}, 1
    s_lshl_b32 s{sT+1}, s{sT+1}, 8
    s_add_u32 s{sT}, s{sT}, s{sT+1}
    s_lshl_b32 s{sT+1}, s{sRB}, 16
    s_add_u32 s{sT}, s{sT}, s{sT+1}
    s_add_u32 s{sT}, s{sT}, {WS_OIM}
    v_lshlrev_b32 v{vO0}, 6, v63
    v_lshl_or_b32 v{vO0}, v60, 4, v{vO0}
    v_lshl_or_b32 v{vO0}, v62, 5, v{vO0}
    v_add_u32 v{vO0}, s{sT}, v{vO0}
    s_lshl_b32 s{sT}, s{sRB}, 11
    s_add_u32 s{sT}, s{sT}, {WS_FO}
    v_and_b32 v{vFO}, 31, v1
    v_lshl_add_u32 v{vFO}, v{vFO}, 6, s{sT}
    """)
    for p in range(8):
        A(f"s_add_u32 s{sO+p}, s{sJ}, {p}\ns_and_b32 s{sO+p}, s{sO+p}, 7\ns_lshl_b32 s{sO+p}, s{sO+p}, 13")
    for r in range(OA, OA + 128, 2): A(f"v_mov_b64 {v(r,2)}, 0")
    if OPT["st1"]: s_touch(rW1, 7168, sW8, 896, 0, 14)
    A("s_barrier")
    stamp(19)
    x_loads()
    A(f"s_lshl_b32 s{sT+2}, s{sW}, 12\ns_add_u32 m0, s{sT+2}, {WKV}\ns_lshl_b32 s{sT}, s{sQ}, 2")
    for i in range(4):
        A.vmem(f"buffer_load_dwordx4 v7, {s(rWKV,4)}, s{sT+2} offen offset:{1024*i} lds", "wkv")
    A(f"""
    s_add_u32 s{sT}, s{sT}, s{sW}
    s_lshl_b32 s{sT+1}, s{sT}, 12
    s_lshl_b32 s{sT}, s{sT}, 15
    """)
    dma_rows(rWQ, 6, sT, sT + 1, WQ, 4, "dma")
    def wkv_sig():
        A.wait(vm=["wkv"])
        lds_signal(C_LN)
    stamp(20)
    layernorm(vLW, wkv_sig)
    A.wait(vm="all")
    lds_signal(C_X)
    stamp(3)
    A(f"""
    v_and_b32 v125, 7, v1
    v_lshl_add_u32 v125, v125, 7, s{sF0}
    v_mov_b32 v{vIDX}, 0xdddddddd
    s_and_b32 s{sT}, s{sW}, 1
    s_lshl_b32 s{sT}, s{sT}, 7
    s_add_u32 s{sT}, s{sT}, {RT}
    v_and_b32 v124, 31, v1
    v_lshl_add_u32 v124, v124, 2, s{sT}
    """)
    lds_spin(C_X, 8, 5, "x")
    A.c("---------------- Q projection ----------------")
    stamp(4)
    def kv_load(buf, wrap=True):
        b = KV0 + 12 * buf
        return [f"buffer_load_dwordx4 {v(b,4)}, v{vKO}, {s(rWS,4)}, s{sCUR} offen {OPT['kld']}",
                f"buffer_load_dwordx4 {v(b+4,4)}, v{vV0}, {s(rWS,4)}, s{sCUR} offen {OPT['kld']}",
                f"buffer_load_dwordx4 {v(b+8,4)}, v{vV1}, {s(rWS,4)}, s{sCUR} offen {OPT['kld']}",
                f"s_add_u32 s{sCUR}, s{sCUR}, {KVS}"] + ([f"s_and_b32 s{sCUR}, s{sCUR}, 0xffff"] if wrap else [])
    first_loads = kv_load(0, wrap=False) + kv_load(1)
    QA = 52; QACC = 100; ND = 3
    def q_read(kp):
        for h in range(2):
            ks = 2 * kp + h
            b = QA + 16 * (kp % ND) + 8 * h
            A.lds(f"ds_read_b64_tr_b16 {v(b,2)}, v{vQT} offset:{2048*ks}", f"q{kp}")
            A.lds(f"ds_read_b64_tr_b16 {v(b+2,2)}, v{vQT} offset:{2048*ks+512}", f"q{kp}")
            A.lds(f"ds_read_b128 {v(b+4,4)}, v{vQX} offset:{32*ks}", f"q{kp}")
    A("s_setprio 1")
    q_read(0)
    A.lds(f"ds_read_b32 v27, v{vCNT} offset:{C_TAG}")
    A.lds(f"ds_read_b32 v124, v124")
    q_read(1)
    for kp in range(16):
        A.wait(lg=[f"q{kp}"])
        for h in range(2):
            b = QA + 16 * (kp % ND) + 8 * h
            A(f"v_mfma_f32_32x32x16_bf16 {v(QACC,16)}, {v(b,4)}, {v(b+4,4)}, {v(QACC,16) if (kp or h) else 0}")
            if h == 0 and kp + ND - 1 < 16: q_read(kp + ND - 1)
            if h == 1 and kp == 1: A(f"v_readfirstlane_b32 s{sTAG}, v27\ns_mov_b32 s{sGOT}, 0")
            if h == 1 and kp == 2: A(f"s_add_u32 s{sLT}, s{sTAG}, s{sXCC}\ns_add_u32 s{sLT}, s{sLT}, {2 + 64 if OPT['force_global'] else 1}")
            if h == 1 and kp == 3: A("v_rcp_f32 v124, v124")
            if h == 1 and kp == 4: A(f"v_mul_f32 v124, s{sQS}, v124")
            if h == 1 and kp == OPT["qp"]: A(f"buffer_load_dword v5, v125, {s(rWS,4)}, 0 offen sc1")
            if h == 0 and kp == OPT["qc"]:
                A(f"s_waitcnt vmcnt(0)\nv_cmp_ne_u32 vcc, s{sLT}, v5\ns_cbranch_vccnz L_notyet")
                for x in first_loads: A(x)
                A(f"s_mov_b32 s{sGOT}, 1")
                A.label("L_notyet")
    A(f"s_mov_b32 s{sLOOP}, 4\ns_nop 10")
    for half in range(2):
        a = QACC + 8 * half
        for r in range(8): A(f"v_mul_f32 v{a+r}, v124, v{a+r}")
        for p in range(4): A(f"v_cvt_pk_bf16_f32 v{a+p}, v{a+2*p}, v{a+2*p+1}")
        A.lds(f"ds_write_b128 v{vQW}, {v(a,4)} offset:{2048*half}")
    A(f"s_cmp_lg_u32 s{sGOT}, 0\ns_cbranch_scc1 L_got")
    poll(125, 5, "kvl", sleep=OPT["psleep"], tag=sLT, tries=OPT["ltry"])
    A(f"s_and_b32 s{sCUR}, s{sCUR}, 0xffff")
    poll(3, 5, "kv0", sleep=4)
    A.label("L_done_kvl")
    for x in first_loads: A(x)
    A.label("L_got")
    A(f"buffer_load_dword v5, v3, {s(rWS,4)}, 0 offen sc1")
    A.wait(lg="all")
    stamp(5)
    A("s_barrier")
    stamp(6)
    for n in (0, 1, 2, 3, 4, 7, 5, 6):
        A(f"ds_read_b128 {v(QF+4*n,4)}, v{vQR[n//2]} offset:{1024*(n%2)}")
    A(f"""
    s_waitcnt vmcnt(6) lgkmcnt(7)
    v_mfma_f32_32x32x16_bf16 {v(SB,16)}, {v(KV0,4)}, {v(QF,4)}, 0
    s_nop 8
    s_waitcnt lgkmcnt(0)
    s_barrier
    s_waitcnt vmcnt(4)
    """)
    stamp(8)
    A.reset()
    def ored_write(slot):
        p, t = slot // 2, slot % 2
        o = OA + 16 * slot
        return [f"ds_write_b128 v{vRW+p}, {v(o,4)} offset:{2048*t}",
                f"ds_write_b128 v{vRW+p}, {v(o+4,4)} offset:{2048*t+1024}",
                f"ds_write_b32 v{vRW+3+p}, v{o+8} offset:{256*t}"]
    def kv_check():
        A(f"s_waitcnt vmcnt(0)\nv_cmp_ne_u32 vcc, s{sTAG}, v5\ns_cbranch_vccz L_done_kv1")
        poll(3, 5, "kv1", sleep=OPT["psleep"])
    XL = KV0 + 12
    def x_res():
        for t4 in range(4):
            A(f"buffer_load_dwordx2 {v(XL+2*t4,2)}, v{vX}, {s(rX,4)}, s{sXR} offen offset:{32*t4}")
        A(f"ds_read_b64 {v(XL+8,2)}, v{vCNT} offset:{C_XN}")
    def att_pass(kt, first=False, loads=True, last=False):
        p0, p1, p2 = OPT["lay"]
        if OPT["pstamp"]:
            A(f"s_waitcnt lgkmcnt(0)\ns_mov_b32 m0, s{sPS}\nv_writelane_b32 v26, s90, m0\ns_add_u32 s{sPS}, s{sPS}, 1\ns_memtime s[90:91]")
        for i in range(8):
            cur = SB + 16 * (i % 2); oth = SB + 16 * ((i + 1) % 2)
            tp = (i - 1) % 8; tn = (i + 1) % 8
            vb = KV0 + 12 * ((kt if i >= 1 else kt - 1) % 3) + 4
            kb = KV0 + 12 * ((kt if i < 7 else kt + 1) % 3)
            ins = {}
            if not (first and i == 0):
                ins.setdefault(p0, []).append(f"v_smfmac_f32_32x32x32_bf16 {v(OA+16*tp,16)}, {v(vb,4)}, {v(oth,8)}, v{vIDX}")
                ins.setdefault(p1, []).append(f"v_smfmac_f32_32x32x32_bf16 {v(OA+16*tp,16)}, {v(vb+4,4)}, {v(oth+8,8)}, v{vIDX}")
            if not (last and i == 7):
                if i == 7: ins.setdefault(p2, []).append(f"s_waitcnt vmcnt({3 if loads else 4})")
                ins.setdefault(p2, []).append(f"v_mfma_f32_32x32x16_bf16 {v(oth,16)}, {v(kb,4)}, {v(QF+4*tn,4)}, 0")
            if loads and i == (OPT["chk"] if first else 0):
                pl = min(p2 + 3, 15)
                if first: ins.setdefault(pl, []).append(kv_check)
                ins.setdefault(pl, []).extend(kv_load((kt + 2) % 3))
            if kt == 14 and i == 1: ins.setdefault(min(p2 + 3, 15), []).append(x_res)
            if last and 1 <= i <= 6:
                for pos, x in zip(OPT["orw"], ored_write(i - 1)): ins.setdefault(pos, []).append(x)
            if last and i == 7:
                ins.setdefault(0, []).extend(sig(C_A))
                ins.setdefault(10, []).append(f"v_smfmac_f32_32x32x32_bf16 {v(OA+112,16)}, {v(vb,4)}, {v(cur,8)}, v{vIDX}")
                ins.setdefault(12, []).append(f"ds_read_b32 v5, v{vCNT} offset:{C_A}")
            for e in range(16):
                for x in ins.get(e, []):
                    if callable(x): x()
                    else: A(x)
                A(f"v_exp_f32 v{cur+e}, v{cur+e}")
    if OPT["pstamp"]: A(f"s_mov_b32 s{sPS}, 0\nv_mov_b32 v26, 0\ns_getreg_b32 s90, hwreg(HW_REG_HW_ID)")
    att_pass(0, first=True)
    A.label("L_att_loop")
    att_pass(1); att_pass(2); att_pass(3)
    A(f"""
    s_sub_u32 s{sLOOP}, s{sLOOP}, 1
    s_cmp_lg_u32 s{sLOOP}, 0
    s_cbranch_scc1 L_att_loop
    """)
    att_pass(13)
    att_pass(14, loads=False)
    lds_check(C_XN, 4, XL + 8, "xa", f"v_readfirstlane_b32 s{sLOC}, v{XL+9}")
    stamp(9)
    att_pass(15, loads=False, last=True)
    A(f"""
    s_mov_b32 s{sT+4}, {hex(f2u(2.0**-30))}
    s_mov_b32 s{sT+5}, {hex(f2u(2.0**100))}
    v_smfmac_f32_32x32x32_bf16 {v(OA+112,16)}, {v(KV0+8,4)}, {v(SB+24,8)}, v{vIDX}
    """)
    if OPT["pstamp"]:
        A(f"""
        s_waitcnt lgkmcnt(0)
        s_mov_b32 m0, s{sPS}
        v_writelane_b32 v26, s90, m0
        s_memtime s[90:91]
        s_waitcnt lgkmcnt(0)
        v_writelane_b32 v26, s90, 17
        s_lshl_b32 s92, s2, 3
        s_add_u32 s92, s92, s{sW8}
        s_lshl_b32 s92, s92, 8
        s_add_u32 s92, s92, {WS_STAMP + 0x100000}
        v_lshlrev_b32 v52, 2, v1
        buffer_store_dword v26, v52, s[{rWS}:{rWS+3}], s92 offen
        """)
    stamp(10)
    lds_check(C_A, 4, 5, "a")
    A.reset()
    def rbuf(p, t): return OA + 12 * (2 * p + t)
    for t in range(2):
        for p in range(3):
            b = rbuf(p, t)
            A.lds(f"ds_read_b32 v{b+8}, v{vRW+7} offset:{512*p+256*t}", f"r{p}{t}")
            A.lds(f"ds_read_b128 {v(b,4)}, v{vRW+6} offset:{4096*p+2048*t}", f"r{p}{t}")
            A.lds(f"ds_read_b128 {v(b+4,4)}, v{vRW+6} offset:{4096*p+2048*t+1024}", f"r{p}{t}")
    A.lds(f"ds_read_b32 v5, v{vCNT} offset:{C_W}", "cw")
    def o_norm(t):
        o = OA + 96 + 16 * t
        d = SB + 16 * t
        A(f"v_rcp_f32 v{d+8}, v{o+8}\ns_cmp_lg_u32 s{sLOC}, 0")
        for q in range(4):
            A(f"v_pk_mul_f32 {v(d+2*q,2)}, {v(o+2*q,2)}, {v(d+8,2)} op_sel_hi:[1,0]")
        for q in range(4):
            A(f"v_cvt_pk_bf16_f32 v{d+12+q}, v{d+2*q}, v{d+2*q+1}")
        x = f"buffer_store_dwordx4 {v(d+12,4)}, v7, {s(rWS,4)}, s{sOST} offen offset:{1024*t}"
        if OPT["oloc"] is None: A(x + " sc1")
        else: store2(x, OPT["oloc"], cmp=False)
    for t in range(2):
        o = OA + 96 + 16 * t
        for p in range(3):
            b = rbuf(p, t)
            A.wait(lg=[f"r{p}{t}"])
            A(f"v_add_f32 v{o+8}, v{o+8}, v{b+8}")
            for q in range(4):
                A(f"v_pk_add_f32 {v(o+2*q,2)}, {v(o+2*q,2)}, {v(b+2*q,2)}")
        o_norm(t)
    lds_signal(C_C)
    stamp(11)
    for t in range(2):
        o = OA + 96 + 16 * t
        A(f"v_maximum3_f32 v52, {'v52' if t else f'v{o+8}'}, |v{o}|, v{o+8}")
        for q in range(3): A(f"v_maximum3_f32 v52, v52, |v{o+1+2*q}|, |v{o+2+2*q}|")
    A(f"""
    v_maximum3_f32 v52, v52, |v{OA+103}|, |v{OA+119}|
    v_min_f32 v53, v{OA+104}, v{OA+120}
    v_cmp_nge_f32 s[{sT+6}:{sT+7}], s{sT+5}, v52
    v_cmp_nle_f32 vcc, s{sT+4}, v53
    s_nop 1
    s_or_b64 s[{sT+6}:{sT+7}], s[{sT+6}:{sT+7}], vcc
    """)
    A("s_branch L_slow" if OPT["force_slow"] else "s_cbranch_scc1 L_slow")
    A.label("L_safe")
    A.reset()
    EO = 16; EACC = 80; EX = 96; EA = 112; NE = 9; EG = EA + 16 * 7
    vE = (vE0, 2, 3, 6); vO1 = 9
    A(f"""
    v_xor_b32 v2, 32, v{vE0}
    v_xor_b32 v3, 64, v{vE0}
    v_xor_b32 v6, 0x60, v{vE0}
    v_add_u32 v{vO1}, 4096, v{vO0}
    """)
    def e_read(ks):
        b = EA + 16 * (ks % NE)
        for t4 in range(4):
            for i in range(2):
                A.lds(f"ds_read_b64_tr_b16 {v(b+4*t4+2*i,2)}, v{vE[t4]} offset:{4096*ks+1024*i}", f"e{ks}")
    lds_check(C_W, 4, 5, "w")
    for ks in range(OPT["epre"]): e_read(ks)
    A("s_waitcnt vmcnt(0)")
    flag_store(f"s{sOFL}", 27, vZ, local=True)
    stamp(12)
    for p in range(8):
        A(f"v_lshlrev_b32 v{EX+2*p}, 16, v{XL+p}\nv_and_b32 v{EX+2*p+1}, 0xffff0000, v{XL+p}")
    if OPT["onepoll"]:
        A(f"s_cmp_lg_u32 s{sW}, 0\ns_cbranch_scc1 L_nopoll")
        A(f"buffer_load_dword v5, v{vFO}, {s(rWS,4)}, 0 offen sc1")
        lg0 = list(A.lg)
        for ks in range(OPT["epre"], OPT["epre2"]): e_read(ks)
        lg1 = list(A.lg)
        A(f"s_waitcnt vmcnt(0)\nv_cmp_ne_u32 vcc, s{sTAG}, v5\ns_cbranch_vccz L_done_o")
        poll(vFO, 5, "o", sleep=OPT["osleep"])
        for x in sig(C_O): A(x)
        A("s_branch L_spun_o")
        A.label("L_nopoll")
        A.lg = lg0
        for ks in range(OPT["epre"], OPT["epre2"]): e_read(ks)
        lds_spin(C_O, 1, 5, "o")
        A.lg = lg1
    else:
        A(f"buffer_load_dword v5, v{vFO}, {s(rWS,4)}, 0 offen sc1")
        for ks in range(OPT["epre"], OPT["epre2"]): e_read(ks)
        A(f"s_waitcnt vmcnt(0)\nv_cmp_ne_u32 vcc, s{sTAG}, v5\ns_cbranch_vccz L_done_o")
        poll(vFO, 5, "o", sleep=OPT["osleep"])
    A.vm = []
    stamp(13)
    def o_load(ks):
        A.vmem(f"buffer_load_dwordx4 {v(EO+4*ks,4)}, v{vO1 if ks & 1 else vO0}, {s(rWS,4)}, s{sO+ks//2} offen {OPT['old']}", f"o{ks}")
    nl = OPT["eo1"]
    for ks in range(nl): o_load(ks)
    for ks in range(OPT["epre2"], NE): e_read(ks)
    for ks in range(16):
        A.wait(vm=[f"o{ks}"])
        if ks in (0, 8): stamp(29 + ks // 8)
        if nl < 16: o_load(nl); nl += 1
        A.wait(lg=[f"e{ks}"])
        b = EA + 16 * (ks % NE)
        for t4 in range(4):
            A(f"v_mfma_f32_16x16x32_bf16 {v(EACC+4*t4,4)}, {v(b+4*t4,4)}, {v(EO+4*ks,4)}, {v(EACC+4*t4,4) if ks else 0}")
        if ks + NE < 16: e_read(ks + NE)
        if ks == OPT["gat"]:
            A("s_barrier")
            for t4 in range(4):
                A.lds(f"ds_read_b128 {v(EG+4*t4,4)}, v{vG} offset:{64*t4}", f"g{t4}")
    stamp(14)
    A.wait(lg="all")
    A("s_nop 3")
    for P in range(2):
        for t4 in (2 * P, 2 * P + 1):
            for q in range(2):
                r = 4 * t4 + 2 * q
                A(f"v_pk_fma_f32 {v(EX+r,2)}, {v(EACC+r,2)}, {v(EG+r,2)}, {v(EX+r,2)}")
        for p in range(4 * P, 4 * P + 4):
            A(f"v_cvt_pk_bf16_f32 v{EO+16+p}, v{EX+2*p}, v{EX+2*p+1}")
        b = EO + 16 + 4 * P
        A(f"""
        s_nop 0
        v_permlane16_swap_b32 v{b}, v{b+2}
        v_permlane16_swap_b32 v{b+1}, v{b+3}
        buffer_store_dwordx4 {v(b,4)}, v{vOUT}, {s(rOUT,4)}, s{sXR} offen offset:{64*P} {OPT["outsc"]}
        """)
    A(f"""
    s_or_b32 s{sT}, s2, s{sW8}
    s_cmp_lg_u32 s{sT}, 0
    s_cbranch_scc1 L_noepoch
    v_mov_b32 v5, s{sTAG}
    """)
    flag_store("0", 5, vZ)
    A.label("L_noepoch")
    if OPT["stamps"]:
        A("s_waitcnt vmcnt(0)")
        stamp(31); stamp_flush()
    A("s_endpgm")

    A.label("L_slow")
    M0_, M1_ = 52, 53
    CI = OA
    A(f"""
    s_waitcnt vmcnt(0) lgkmcnt(0)
    s_lshl_b32 s{sT+4}, s{sW}, 16
    v_subrev_u32 v{vKO}, s{sT+4}, v{vKO}
    v_subrev_u32 v{vV0}, s{sT+4}, v{vV0}
    v_subrev_u32 v{vV1}, s{sT+4}, v{vV1}
    v_mov_b32 v{M0_}, 0xff800000
    v_mov_b32 v{M1_}, 0xff800000
    s_mov_b32 s{sCUR}, 0
    s_mov_b32 s{sLOOP}, 64
    """)
    A.label("L_slow1")
    A(f"""
    buffer_load_dwordx4 {v(KV0,4)}, v{vKO}, {s(rWS,4)}, s{sCUR} offen sc1
    s_add_u32 s{sCUR}, s{sCUR}, {KVS}
    s_waitcnt vmcnt(0)
    v_mfma_f32_32x32x16_bf16 {v(SB,16)}, {v(KV0,4)}, {v(QF+24,4)}, 0
    v_mfma_f32_32x32x16_bf16 {v(SB+16,16)}, {v(KV0,4)}, {v(QF+28,4)}, 0
    s_nop 15
    """)
    for q in range(8):
        A(f"v_max3_f32 v{M0_}, v{M0_}, v{SB+2*q}, v{SB+2*q+1}")
    for q in range(8):
        A(f"v_max3_f32 v{M1_}, v{M1_}, v{SB+16+2*q}, v{SB+16+2*q+1}")
    A(f"""
    s_sub_u32 s{sLOOP}, s{sLOOP}, 1
    s_cmp_lg_u32 s{sLOOP}, 0
    s_cbranch_scc1 L_slow1
    v_mov_b32 v54, v{M0_}
    v_mov_b32 v55, v{M1_}
    s_nop 1
    v_permlane32_swap_b32 v{M0_}, v54
    v_permlane32_swap_b32 v{M1_}, v55
    s_nop 1
    v_max_f32 v{M0_}, v{M0_}, v54
    v_max_f32 v{M1_}, v{M1_}, v55
    """)
    for r in range(16):
        A(f"v_sub_f32 v{CI+r}, 0, v{M0_}")
        A(f"v_sub_f32 v{CI+16+r}, 0, v{M1_}")
    for r in range(0, 32, 2): A(f"v_mov_b64 {v(OA+96+r,2)}, 0")
    A(f"""
    s_mov_b32 s{sCUR}, 0
    s_mov_b32 s{sLOOP}, 64
    """)
    A.label("L_slow2")
    for x in kv_load(0, wrap=False): A(x)
    A(f"""
    s_waitcnt vmcnt(0)
    v_mfma_f32_32x32x16_bf16 {v(SB,16)}, {v(KV0,4)}, {v(QF+24,4)}, {v(CI,16)}
    v_mfma_f32_32x32x16_bf16 {v(SB+16,16)}, {v(KV0,4)}, {v(QF+28,4)}, {v(CI+16,16)}
    s_nop 15
    """)
    for r in range(32): A(f"v_exp_f32 v{SB+r}, v{SB+r}")
    A("s_nop 1")
    for t in range(2):
        A(f"v_smfmac_f32_32x32x32_bf16 {v(OA+96+16*t,16)}, {v(KV0+4,4)}, {v(SB+16*t,8)}, v{vIDX}")
        A(f"v_smfmac_f32_32x32x32_bf16 {v(OA+96+16*t,16)}, {v(KV0+8,4)}, {v(SB+16*t+8,8)}, v{vIDX}")
    A(f"""
    s_nop 7
    s_sub_u32 s{sLOOP}, s{sLOOP}, 1
    s_cmp_lg_u32 s{sLOOP}, 0
    s_cbranch_scc1 L_slow2
    s_nop 15
    """)
    o_norm(0); o_norm(1)
    A("s_branch L_safe")

prologue()
helper()
attention()
for x in deferred: A(x)
A.label("L_end")

head = open(f"cdna_kernels/{NAME}.s.ref").read()
pre = head[:head.index("; @launch")]
out = pre + f"""; @launch grid=(256,1,1) block=(512,1,1) lds={LDS_BYTES}
.amdgcn_target "amdgcn-amd-amdhsa--gfx950"
.text
.globl {NAME}_kernel
.p2align 8
.type {NAME}_kernel,@function
{NAME}_kernel:
""" + A.text() + f"""s_endpgm
.section .rodata,"a"
.p2align 6
.amdhsa_kernel {NAME}_kernel
  .amdhsa_next_free_vgpr 256
  .amdhsa_next_free_sgpr 102
  .amdhsa_accum_offset 256
  .amdhsa_group_segment_fixed_size 0
  .amdhsa_kernarg_size 104
  .amdhsa_user_sgpr_count 2
  .amdhsa_user_sgpr_kernarg_segment_ptr 1
  .amdhsa_system_sgpr_workgroup_id_x 1
.end_amdhsa_kernel
"""
open(sys.argv[1], "w").write(out)
```
